```python
import torch

def _softmax(x, axis=-1):
    return torch.softmax(x, dim=axis)
def _gelu(x):
    return torch.nn.functional.gelu(x, approximate="tanh")
def _silu(x):
    return torch.nn.functional.silu(x)
def _sigmoid(x):
    return torch.sigmoid(x)
def _layernorm(x, axis=-1, eps=1e-5):
    m = x.mean(dim=axis, keepdim=True)
    v = x.var(dim=axis, keepdim=True, unbiased=False)
    return (x - m) / torch.sqrt(v + eps)
def _scatter_add(tgt, idx, src, axis=0):
    return tgt.clone().index_add_(axis, idx, src)
def _segment_sum(src, seg, n):
    out = torch.zeros((n,) + src.shape[1:], dtype=src.dtype)
    return out.index_add_(0, seg, src)
def _pad(x, pw):
    flat = tuple(v for pair in reversed(pw) for v in pair)
    return torch.nn.functional.pad(x, flat)

kernel_name = 'sequential_preLN__ssm_conv_s4__dense_activation_relu__prompt'

def setup_inputs():

    _w = (lambda a: (lambda t: t.to(torch.bfloat16) if t.is_floating_point() else t)(torch.as_tensor(a)))
    def _A_setup():
        B, L, D, N = 1, 2048, 576, 128
        A_re = -(lambda _x: torch.exp(torch.as_tensor(_x)))((lambda *s: torch.randn(*s, dtype=torch.bfloat16) * 6.4)(D, N))
        A_im = torch.pi * (lambda *s: torch.randn(*s, dtype=torch.bfloat16) * 0.05)(D, N)
        B_re = (lambda *s: torch.randn(*s, dtype=torch.bfloat16) * 0.05)(D, N)
        B_im = (lambda *s: torch.randn(*s, dtype=torch.bfloat16) * 0.05)(D, N)
        C_re = (lambda *s: torch.randn(*s, dtype=torch.bfloat16) * 0.05)(D, N)
        C_im = (lambda *s: torch.randn(*s, dtype=torch.bfloat16) * 0.05)(D, N)
        log_dt = (lambda *s: torch.randn(*s, dtype=torch.bfloat16) * 0.05)(D) * 0.5 - 4.0
        Dskip = (lambda *s: torch.randn(*s, dtype=torch.bfloat16) * 0.05)(D)
        return {
            "u": _w((lambda *s: torch.randn(*s, dtype=torch.bfloat16) * 0.05)(B, L, D)),
            "A_re": _w(A_re),
            "A_im": _w(A_im),
            "B_re": _w(B_re),
            "B_im": _w(B_im),
            "C_re": _w(C_re),
            "C_im": _w(C_im),
            "log_dt": _w(log_dt),
            "Dskip": _w(Dskip),
        }
    _A_in = _A_setup()

    def _B_setup():
        B, S, D, Dff = 1, 2048, 576, 4608
        return {
            "x": _w((lambda *s: torch.randn(*s, dtype=torch.bfloat16) * 0.05)(B, S, D)),
            "w1": _w((lambda *s: torch.randn(*s, dtype=torch.bfloat16) * 0.05)(D, Dff)),
            "w2": _w((lambda *s: torch.randn(*s, dtype=torch.bfloat16) * 0.05)(Dff, D)),
        }
    _B_in = _B_setup()

    return {
        "A_u": _A_in["u"],
        "A_A_re": _A_in["A_re"],
        "A_A_im": _A_in["A_im"],
        "A_B_re": _A_in["B_re"],
        "A_B_im": _A_in["B_im"],
        "A_C_re": _A_in["C_re"],
        "A_C_im": _A_in["C_im"],
        "A_log_dt": _A_in["log_dt"],
        "A_Dskip": _A_in["Dskip"],
        "B_x": _B_in["x"],
        "B_w1": _B_in["w1"],
        "B_w2": _B_in["w2"],
    }

def reference(A_u, A_A_re, A_A_im, A_B_re, A_B_im, A_C_re, A_C_im, A_log_dt, A_Dskip, B_x, B_w1, B_w2):
    def _A_ref(u, A_re, A_im, B_re, B_im, C_re, C_im, log_dt, Dskip):
        Bsz, L, D = u.shape
        dt = torch.exp(log_dt)[:, None]
        A = A_re + 1j * A_im
        Bc = B_re + 1j * B_im
        Cc = C_re + 1j * C_im
        logdA = dt * A
        dB = dt * Bc
        l = (lambda x, dt: x.to(dt))(torch.arange(L), A_re.dtype)
        P = torch.exp(logdA[:, :, None] * l[None, None, :])
        K = torch.einsum("dn,dnl,dn->dl", Cc, P, dB).real
        L2 = 2 * L
        Kp = _pad(K, ((0, 0), (0, L)))
        up = (lambda x, *d: x.permute(*d))(u, 0, 2, 1)
        up = _pad(up, ((0, 0), (0, 0), (0, L)))
        Kf = (lambda x, axes=(-2,-1): torch.fft.rfft2(x.float(), dim=axes))(Kp[:, None, :], axes=(-2, -1))
        Uf = (lambda x, axes=(-2,-1): torch.fft.rfft2(x.float(), dim=axes))(up[:, :, None, :], axes=(-2, -1))
        Yf = Uf * Kf[None, :, :, :]
        y = (lambda x, s, axes=(-2,-1): torch.fft.irfft2(x, s=s, dim=axes).to(torch.bfloat16))(Yf, (1, L2), axes=(-2, -1))[:, :, 0, :L]
        y = (lambda x, *d: x.permute(*d))(y, 0, 2, 1) + u * Dskip[None, None, :]
        return y

    def _B_ref(x, w1, w2):
        h = torch.einsum("bsd,df->bsf", x, w1)
        zero = torch.zeros_like(h)
        h = torch.maximum(h, zero)
        return torch.einsum("bsf,fd->bsd", h, w2)

    x = A_u
    h = x + _A_ref(_layernorm(x, axis=-1), A_A_re, A_A_im, A_B_re, A_B_im, A_C_re, A_C_im, A_log_dt, A_Dskip)
    h2 = h + _B_ref(_layernorm(h, axis=-1), B_w1, B_w2)
    return h2
```

```python
import re

TRANS = ("v_exp_f32", "v_log_f32", "v_rcp_f32", "v_rsq_f32", "v_sqrt_f32", "v_sin_f32", "v_cos_f32")
REG = re.compile(r"^-?\|?(?:abs\()?([vas])(?:(\d+)|\[(\d+):(\d+)\])\)?\|?$")


def regs_of(tok):
    tok = tok.strip()
    if tok in ("vcc", "vcc_lo", "vcc_hi"):
        return {("s", "vcc")}
    if tok in ("exec", "exec_lo", "exec_hi"):
        return {("s", "exec")}
    if tok == "m0":
        return {("s", "m0")}
    m = REG.match(tok)
    if not m:
        return set()
    k = m.group(1)
    if m.group(2) is not None:
        return {(k, int(m.group(2)))}
    return {(k, i) for i in range(int(m.group(3)), int(m.group(4)) + 1)}


class Ins:
    def __init__(self, text):
        self.text = text
        body = text.split(";")[0].strip()
        self.is_ins = bool(body) and not body.endswith(":") and not body.startswith(".")
        self.op = ""
        self.dst, self.src = set(), set()
        self.srcA = self.srcB = self.srcC = set()
        if not self.is_ins:
            return
        parts = body.split(None, 1)
        op = self.op = parts[0]
        rest = parts[1] if len(parts) > 1 else ""
        toks = [t.strip() for t in rest.split(",")] if rest else []
        mods = ""
        if toks:
            last = toks[-1].split(None, 1)
            cut = next((i for i, t in enumerate(toks) if " " in t), None)
            if cut is not None:
                head, tail = toks[cut].split(None, 1)
                mods = tail + "," + ",".join(toks[cut + 1:])
                toks = toks[:cut] + [head]
        self.mods = mods
        R = [regs_of(t) for t in toks]
        U = lambda xs: set().union(*xs) if xs else set()
        self.mfma = op.startswith("v_mfma")
        self.valu = op.startswith("v_") and not self.mfma
        self.trans = any(op.startswith(t) for t in TRANS)
        self.dot = op.startswith("v_dot")
        self.dpp = "_dpp" in op or "row_" in mods or "quad_perm" in mods or "wave_" in mods
        self.perml = op.startswith("v_permlane")
        self.rdlane = op.startswith("v_readlane") or op.startswith("v_readfirstlane")
        self.vmem = op.startswith(("buffer_", "global_"))
        self.ds = op.startswith("ds_")
        self.salu = op.startswith("s_")
        self.ldsdma = self.vmem and re.search(r"\blds\b", mods) is not None
        self.wide_store = False
        self.passes = 0
        if self.mfma:
            self.passes = 8 if "32x32" in op else 4
            self.dst = R[0]
            self.srcA, self.srcB, self.srcC = R[1], R[2], R[3]
            self.src = U(R[1:])
        elif self.valu:
            if op.startswith("v_cmp"):
                self.dst, self.src = R[0], U(R[1:])
            elif self.perml:
                self.dst = self.src = R[0] | R[1]
            elif "_co_" in op:
                self.dst, self.src = R[0] | R[1], U(R[2:])
            else:
                self.dst, self.src = R[0], U(R[1:])
                if op.startswith(("v_fmac", "v_dot2c", "v_writelane")) or self.dpp:
                    self.src |= R[0]
        elif self.vmem:
            if "store" in op or "atomic" in op:
                self.src = U(R)
                self.data = R[0] if op.startswith("buffer_") else R[1]
                self.wide_store = "x3" in op or "x4" in op
                if "atomic" in op and "sc0" in mods:
                    self.dst = R[0]
            elif self.ldsdma:
                self.src = U(R) | {("s", "m0")}
            elif op in ("buffer_wbl2", "buffer_inv"):
                pass
            else:
                self.dst, self.src = R[0], U(R[1:])
        elif self.ds:
            if op.startswith(("ds_read", "ds_bpermute", "ds_permute", "ds_swizzle")) or "_rtn" in op:
                self.dst, self.src = R[0], U(R[1:])
            else:
                self.src = U(R)
        elif self.salu:
            if op.startswith(("s_cmp", "s_cbranch", "s_branch", "s_waitcnt", "s_nop", "s_barrier", "s_endpgm",
                              "s_sleep", "s_setprio", "s_bitcmp")):
                self.src = U(R)
            else:
                self.dst, self.src = (R[0] if R else set()), U(R[1:])
                if "saveexec" in op:
                    self.dst |= {("s", "exec")}

    def states(self):
        if self.op == "s_nop":
            return int(self.text.split(";")[0].split()[1]) + 1
        return 1


def need(p, c):
    n = 0
    vecs = lambda s: {r for r in s if r[0] in "va"}
    scal = lambda s: {r for r in s if r[0] == "s"}
    if p.valu:
        w = vecs(p.dst)
        if c.mfma and w & c.src:
            n = max(n, 3 if p.dot else 2)
        if c.valu and w & c.src:
            if c.dpp or c.perml:
                n = max(n, 2)
            if c.rdlane:
                n = max(n, 1)
            if p.trans and not c.trans:
                n = max(n, 1)
        if p.dot and (c.valu or c.vmem or c.ds) and w & (c.src | c.dst):
            same_chain = c.op == p.op and not (w & c_ab(c))
            if not same_chain:
                n = max(n, 3)
        sw = scal(p.dst)
        if sw & c.src:
            if c.valu:
                n = max(n, 4 if (c.rdlane or c.op.startswith("v_writelane")) else 2)
            if c.vmem:
                n = max(n, 5)
            if c.salu:
                n = max(n, 1)
    if p.mfma:
        big = 12 if p.passes == 8 else 8
        if c.mfma:
            if p.dst & (c.srcA | c.srcB):
                n = max(n, big)
            if p.dst & c.srcC and not (p.dst == c.srcC and p.passes == c.passes):
                n = max(n, big - 2)
        elif (c.valu or c.vmem or c.ds) and p.dst & (c.src | c.dst):
            n = max(n, big)
        if c.valu and p.srcC & c.dst:
            n = max(n, 7 if p.passes == 8 else 3)
    if p.salu and ("s", "m0") in p.dst and c.ldsdma:
        n = max(n, 1)
    if p.vmem and p.wide_store and p.data & c.dst:
        n = max(n, 2)
    return n


def c_ab(c):
    toks = [t.strip() for t in c.text.split(";")[0].split(None, 1)[1].split(",")]
    return regs_of(toks[1]) | regs_of(toks[2].split()[0])


def pad_hazards(lines):
    out, hist, added = [], [], 0
    for ln in lines:
        c = Ins(ln)
        if not c.is_ins:
            out.append(ln)
            continue
        dist, lack = 0, 0
        for p in reversed(hist):
            lack = max(lack, need(p, c) - dist)
            dist += p.states()
            if dist >= 14:
                break
        if lack > 0:
            nop = f"    s_nop {lack - 1}"
            out.append(nop)
            hist.append(Ins(nop))
            added += lack
        out.append(ln)
        hist.append(c)
        if c.op in ("s_endpgm", "s_branch"):
            hist = []
        hist = hist[-16:]
    return out, added


class Asm:
    def __init__(self):
        self.lines = []

    def __call__(self, text):
        for ln in text.strip("\n").split("\n"):
            s = ln.strip()
            if not s:
                continue
            self.lines.append(s if (s.endswith(":") or s.startswith(".")) else "    " + s)

    def ext(self, lst):
        for t in lst:
            self(t)


def v(i, n=1):
    return f"v{i}" if n == 1 else f"v[{i}:{i + n - 1}]"


def a(i, n=1):
    return f"a{i}" if n == 1 else f"a[{i}:{i + n - 1}]"


def s(i, n=1):
    return f"s{i}" if n == 1 else f"s[{i}:{i + n - 1}]"


def interleave(main, fill, start=0, per=1, every=1):
    out, k = [], 0
    for i, m in enumerate(main):
        out.append(m)
        if i >= start and (i - start) % every == 0:
            for _ in range(per):
                if k < len(fill):
                    out.append(fill[k])
                    k += 1
    out.extend(fill[k:])
    return out


def sizes_of(lines):
    import subprocess
    src = '.amdgcn_target "amdgcn-amd-amdhsa--gfx950"\n.text\n' + "\n".join(l for l in lines if not l.startswith(".p2align")) + "\n"
    r = subprocess.run(["llvm-mc", "-triple=amdgcn-amd-amdhsa", "-mcpu=gfx950", "-show-encoding"],
                       input=src, capture_output=True, text=True)
    assert r.returncode == 0, r.stderr[:3000]
    enc = [(l.split()[0], l.split("encoding: [")[1].count(",") + 1) for l in r.stdout.split("\n") if "encoding: [" in l]
    return enc


NO_E64 = ("v_readfirstlane", "v_permlane", "v_nop", "v_fmamk", "v_fmaak", "v_accvgpr", "v_swap", "v_dot2c")


def align_pass(lines):
    enc = iter(sizes_of(lines))
    items = []
    for ln in lines:
        c = Ins(ln)
        if c.is_ins:
            op, sz = next(enc)
            items.append((ln, sz, sz == 4 and op.endswith("_e32") and not op.startswith(NO_E64), c))
        else:
            items.append((ln, 0, False, c))
    INF = 1e18
    cost = [0.0] + [INF] * 7
    back = []
    dense = 0
    for ln, sz, wid, c in items:
        new, bp = [INF] * 8, [None] * 8
        if sz == 0:
            if ln.startswith(".p2align"):
                b = min(range(8), key=lambda k: cost[k])
                new[0], bp[0] = cost[b], (b, 0)
            else:
                new, bp = cost, [(k, 0) for k in range(8)]
        else:
            w = 1.0 if dense >= 2 and not c.mfma else 0.1
            dense = 0 if c.mfma else dense + 1
            opts = [(sz, 0, 0.0)] + ([(8, 1, 0.01)] if wid else []) + ([(8, 2, 1.2)] if sz == 4 and not wid and not c.op.startswith(("s_branch", "s_cbranch", "s_endpgm")) else [])
            for k in range(8):
                if cost[k] >= INF:
                    continue
                for z, how, extra in opts:
                    t = cost[k] + extra + (w if (z >= 8 and k == 7 and how != 2) else 0.0)
                    n = (k + z // 4) % 8
                    if t < new[n]:
                        new[n], bp[n] = t, (k, how)
        back.append(bp)
        cost = new
    k = min(range(8), key=lambda q: cost[q])
    total = cost[k]
    out = []
    for (ln, sz, wid, c), bp in zip(reversed(items), reversed(back)):
        k, how = bp[k]
        if how == 2:
            out.append("    s_nop 0")
        out.append(ln.replace(c.op, c.op.replace("_e32", "") + "_e64", 1) if how == 1 else ln)
    return out[::-1], total
```

```python
from asmlib import *

NAME = "sequential_preLN__ssm_conv_s4__dense_activation_relu__prompt"

KA_X, KA_ARE, KA_AIM, KA_BRE, KA_BIM, KA_CRE, KA_CIM, KA_LDT, KA_DSK = 0, 8, 16, 24, 32, 40, 48, 56, 64
KA_W1, KA_W2, KA_OUT, KA_DBG, KA_WS = 80, 88, 96, 104, 112

X_BYTES = 2359296
W_BYTES = 5308416

UR = 0
KT = UR + 4718592
HT = KT + 576 * 3072
W1S = HT + X_BYTES
W2S = W1S + W_BYTES
PP = W2S + W_BYTES
FL = PP + 8 * X_BYTES
CNT = FL + 524288
WS_END = CNT + 65536

R3B, R2B, RD0B, RD1B = 0, 256, 720, 1826

LOG2E = 0x3FB8AA3B
INV2PI = 0x3E22F983
INV576 = 0x3AE38E39
EPS = 0x3727C5AC
ONES = 0x3F803F80


def srd(A, d, p, nbytes):
    A(f"s_mov_b32 s{d}, s{p}")
    A(f"s_and_b32 s{d + 1}, s{p + 1}, 0xffff")
    A(f"s_mov_b32 s{d + 2}, {nbytes}")
    A(f"s_mov_b32 s{d + 3}, 0x20000")


class Cnt:
    def __init__(self, name, mx):
        self.name, self.mx, self.n, self.tags, self.done = name, mx, 0, {}, 0

    def issue(self, tag=None):
        self.n += 1
        if tag is not None:
            self.tags[tag] = self.n

    def wait(self, tag, force=False):
        pos = self.tags[tag]
        if pos <= self.done and not force:
            return []
        k = min(self.n - pos, self.mx)
        self.done = max(self.done, self.n - k)
        return [f"s_waitcnt {self.name}({k})"]

    def drain(self):
        self.done = self.n
        return [f"s_waitcnt {self.name}(0)"]


def kernel_head(A, name):
    A(f".globl {name}")
    A(".p2align 8")
    A(f".type {name},@function")
    A(f"{name}:")


def descriptor(name, vgpr, acc, sgpr=96):
    return f""".p2align 6
.amdhsa_kernel {name}
  .amdhsa_next_free_vgpr {vgpr}
  .amdhsa_next_free_sgpr {sgpr}
  .amdhsa_accum_offset {acc}
  .amdhsa_group_segment_fixed_size 0
  .amdhsa_kernarg_size 120
  .amdhsa_user_sgpr_count 2
  .amdhsa_user_sgpr_kernarg_segment_ptr 1
  .amdhsa_system_sgpr_workgroup_id_x 1
.end_amdhsa_kernel
"""


PROF = False
PROF_OFF = 208 << 20
S_PR = 84


def stamp(A, i):
    if PROF:
        A(f"s_memrealtime s[{S_PR + 2 * i}:{S_PR + 2 * i + 1}]")


def stamp_item(i):
    return [f"s_memrealtime s[{S_PR + 2 * i}:{S_PR + 2 * i + 1}]"] if PROF else []


def prof_clear(A):
    if PROF:
        for i in range(1, 8):
            A(f"s_mov_b32 s{S_PR + 2 * i}, 0")


def prof_flush(A, kern):
    if not PROF:
        return
    A("s_waitcnt vmcnt(0)")
    stamp(A, 7)
    A(f"s_load_dwordx2 s[100:101], s[0:1], {KA_WS}")
    A("s_waitcnt lgkmcnt(0)")
    A(f"s_add_u32 s100, s100, {PROF_OFF + kern * (1 << 20)}")
    A("s_addc_u32 s101, s101, 0")
    A("v_lshrrev_b32 v1, 6, v0")
    A("v_lshlrev_b32 v1, 5, v1")
    A("s_lshl_b32 s2, s2, 8")
    A("v_add_u32 v1, s2, v1")
    for h in range(2):
        for i in range(4):
            A(f"v_mov_b32 v{4 + i}, s{S_PR + 8 * h + 2 * i}")
        A(f"global_store_dwordx4 v1, v[4:7], s[100:101] offset:{16 * h}")
        A("s_waitcnt vmcnt(0)")
```

```python
import re, sys
from common import *
STAMP_OFF = 200 << 20
def stamp_code(slot, wg=0):
    lab = f"L_stamp{slot}"
    return [f"    s_cmp_lg_u32 s2, {wg}", f"    s_cbranch_scc1 {lab}",
            f"    s_load_dwordx2 s[92:93], s[0:1], {KA_WS}", "    s_memrealtime s[94:95]", "    s_waitcnt lgkmcnt(0)",
            f"    s_add_u32 s92, s92, {STAMP_OFF + 8 * slot}", "    s_addc_u32 s93, s93, 0",
            "    v_mov_b32 v1, s94", "    v_mov_b32 v2, 0", "    s_nop 1",
            "    global_store_dword v2, v1, s[92:93]", f"{lab}:"]
def make(src, k, base_us=100):
    lines = src.split("\n")
    out, n = [], 0
    last_launch = max(i for i, l in enumerate(lines) if l.startswith("; @launch"))
    for i, l in enumerate(lines):
        if l.startswith('.section .rodata'):
            out += [".globl z_kernel", ".p2align 8", ".type z_kernel,@function", "z_kernel:",
                    "    s_cmp_lg_u32 s2, 0", "    s_cbranch_scc1 L_z_end",
                    f"    s_load_dwordx2 s[4:5], s[0:1], {KA_WS}", "    s_memrealtime s[8:9]", "    s_waitcnt lgkmcnt(0)",
                    f"    s_add_u32 s4, s4, {STAMP_OFF}", "    s_addc_u32 s5, s5, 0",
                    "    v_mov_b32 v2, 0", f"    global_load_dword v1, v2, s[4:5] offset:{8 * max(k, 0)} sc1", "    global_load_dword v3, v2, s[4:5] sc1", "    s_waitcnt vmcnt(0)",
                    "    v_readfirstlane_b32 s6, v1", "    v_readfirstlane_b32 s7, v3", "    s_nop 3"]
            if k < 0: out += ["    s_mov_b32 s6, s8"]
            out += [f"    s_sub_u32 s6, s6, s7", "    s_min_u32 s6, s6, 20000", f"    s_add_u32 s6, s6, {base_us * 100}",
                    "L_z_spin:", "    s_memrealtime s[8:9]", "    s_waitcnt lgkmcnt(0)", "    s_sub_u32 s8, s8, s7",
                    "    s_cmp_lt_u32 s8, s6", "    s_cbranch_scc1 L_z_spin", "L_z_end:", "    s_endpgm"]
            out.append(l); out.append(descriptor("z_kernel", 8, 8, 16)); continue
        out.append(l.replace(".amdhsa_next_free_sgpr 32", ".amdhsa_next_free_sgpr 96"))
        if i == last_launch: out.append("; @launch kernel=z_kernel grid=(1,1,1) block=(64,1,1) lds=0")
        if re.match(r"k\w*_kernel:$", l):
            out += stamp_code(n); n += 1
    return "\n".join(out)
if __name__ == "__main__":
    src = open(sys.argv[1]).read()
    for k in map(int, sys.argv[2:]):
        open(f"diag_{k if k >= 0 else 'z'}.s", "w").write(make(src, k))
```

```python
from common import *

HB = 73728
STB = 147456
K3_LDS = STB + 512

S_WAVE, S_J, S_TT = 3, 4, 5
S_WS, S_OUT = 8, 12
S_CUR, S_NXT, S_W2B, S_N, S_LP = 16, 17, 18, 19, 20
S_PO, S_FO, S_GL, S_GC, S_RO = 21, 22, 23, 24, 25
S_G8F, S_G8D, S_G8O, S_OO = 26, 27, 28, 29
S_FAC, S_SP = 30, 31
S_T = 72
S_MA, S_MC, S_MD = 74, 76, 78

VW = 4
VF0 = 9
HA = 10
HW = 14
HR = 18
RS = 20
VONE, VFL, VG8, VO = 24, 25, 26, 27
TP = 28
ACC, FIN = 32, 48
PK = 64
LAND = 72
SUM = 80
SQ, SM = 96, 100
UT = 104
ACTV = 108
WR = 140
VPO, VRI, VFI = 212, 213, 214
V4, VG8O = 215, 216
UX = 220
NV = 236

STEPPROF = False
CFG = dict(LA1=18, LA2=18, ep=8, epr=2, fs=72 + 16, fl=72 + 68, ck=144 + 60, ac=216 + 52, hs=13)


def act(m, ks, n=4, o=0):
    i = 4 * ks + m
    return a(4 * i + o, n) if i < 64 else v(ACTV + 4 * (i - 64) + o, n)


def ffn(A, p_out, cleared):
    cfg = CFG
    ws, so = f"s[{S_WS}:{S_WS + 3}]", f"s[{S_OUT}:{S_OUT + 3}]"
    A(f"s_lshl_b32 s{S_J}, s2, 1")
    A(f"s_bfe_u32 s{S_T}, s2, 0x10003")
    A(f"s_or_b32 s{S_J}, s{S_J}, s{S_T}")
    A(f"s_and_b32 s{S_J}, s{S_J}, 7")
    A(f"s_lshr_b32 s{S_TT}, s2, 4")
    A(f"s_and_b32 s{S_T}, s2, 4")
    A(f"s_lshl_b32 s{S_T}, s{S_T}, 2")
    A(f"s_or_b32 s{S_TT}, s{S_TT}, s{S_T}")
    A(f"v_lshlrev_b32 v{VW}, 4, v2")
    for i in range(1, 5):
        A(f"v_add_u32 v{VW + i}, {4096 * i}, v{VW}")
    A(f"s_mul_i32 s{S_T}, s{S_TT}, 73728")
    A(f"s_lshl_b32 s{S_T + 1}, s{S_WAVE}, 10")
    A(f"s_add_u32 s{S_T}, s{S_T}, s{S_T + 1}")
    A(f"s_mul_i32 s{S_NXT}, s{S_J}, {9 * 73728}")
    A(f"s_mul_i32 s{S_T + 2}, s{S_WAVE}, 18432")
    A(f"s_add_u32 s{S_NXT}, s{S_NXT}, s{S_T + 2}")
    A(f"s_add_u32 s{S_W2B}, s{S_NXT}, {W2S}")
    A(f"s_add_u32 s{S_NXT}, s{S_NXT}, {W1S}")
    A(f"s_add_u32 s{S_CUR}, s{S_T}, {HT}")
    vm, lg = Cnt("vmcnt", 63), Cnt("lgkmcnt", 15)
    nx = [0]

    def wload(cur_step):
        f = nx[0]
        nx[0] += 1
        st, ks = divmod(f, 18)
        vm.issue(("w", f))
        sr = S_CUR if st == cur_step else S_NXT
        return f"buffer_load_dwordx4 {v(WR + 4 * ks, 4)}, v{VW + ks // 4}, {ws}, s{sr} offen offset:{1024 * (ks % 4)} sc1"
    setup = Asm()
    B = setup
    srd(B, S_OUT, p_out, X_BYTES)
    B(f"v_lshrrev_b32 v{TP}, 2, v2")
    B(f"v_bfe_u32 v{TP + 1}, v2, 3, 2")
    B(f"v_xor_b32 v{TP + 1}, s{S_WAVE}, v{TP + 1}")
    B(f"v_and_b32 v{TP + 2}, 3, v2")
    B(f"v_lshlrev_b32 v{TP + 2}, 3, v{TP + 2}")
    B(f"v_lshl_add_u32 v{TP + 2}, v{TP}, 7, v{TP + 2}")
    B(f"v_lshl_add_u32 v{HA}, v{TP + 1}, 5, v{TP + 2}")
    for m in range(1, 4):
        B(f"v_xor_b32 v{HA + m}, {32 * m}, v{HA}")
    B(f"v_add_u32 v{HR}, {HB}, v{VW}")
    B(f"v_add_u32 v{HR + 1}, {HB + 36864}, v{VW}")
    B(f"s_lshr_b32 s{S_T}, s{S_WAVE}, 1")
    B(f"s_lshl_b32 s{S_T}, s{S_T}, 12")
    B(f"s_and_b32 s{S_T + 2}, s{S_WAVE}, 1")
    B(f"s_lshl_b32 s{S_T + 2}, s{S_T + 2}, 3")
    B(f"s_add_u32 s{S_T}, s{S_T}, s{S_T + 2}")
    for m in range(4):
        B(f"s_xor_b32 s{S_T + 2}, s{S_T + 1}, {1024 * m}")
        B(f"s_add_u32 s{S_T + 2}, s{S_T + 2}, s{S_T}")
        B(f"v_add_u32 v{HW + m}, s{S_T + 2}, v{HR}")
    B(f"s_mul_i32 s{S_T}, s{S_TT}, {9 * 65536}")
    B(f"s_add_u32 s{S_T}, s{S_T}, {PP}")
    B(f"s_lshl_b32 s{S_G8D}, s{S_J}, 10")
    B(f"s_add_u32 s{S_G8D}, s{S_G8D}, s{S_T}")
    B(f"s_lshl_b32 s{S_T + 2}, s{S_WAVE}, 8")
    B(f"s_add_u32 s{S_G8D}, s{S_G8D}, s{S_T + 2}")
    B(f"s_lshl_b32 s{S_T + 2}, s{S_WAVE}, 11")
    B(f"s_add_u32 s{S_T}, s{S_T}, s{S_T + 2}")
    B(f"s_lshl_b32 s{S_RO}, s{S_J}, 13")
    B(f"s_add_u32 s{S_T + 2}, s{S_T}, s{S_RO}")
    B(f"v_add_u32 v{VPO}, s{S_T + 2}, v{VW}")
    B(f"s_lshl_b32 s{S_PO}, s{S_J}, 16")
    B(f"s_add_u32 s{S_T + 2}, s{S_T}, s{S_PO}")
    B(f"v_add_u32 v{VRI}, s{S_T + 2}, v{VW}")
    B(f"s_lshl_b32 s{S_T}, s{S_TT}, 10")
    B(f"s_add_u32 s{S_T}, s{S_T}, {FL}")
    B(f"s_lshr_b32 s{S_T + 2}, s{S_J}, 1")
    B(f"s_lshl_b32 s{S_T + 2}, s{S_T + 2}, 2")
    B(f"s_add_u32 s{S_G8F}, s{S_T}, s{S_T + 2}")
    B(f"s_lshl_b32 s{S_T + 2}, s{S_WAVE}, 2")
    B(f"s_add_u32 s{S_T}, s{S_T}, s{S_T + 2}")
    B(f"s_lshl_b32 s{S_FO}, s{S_J}, 7")
    B(f"s_add_u32 s{S_T + 2}, s{S_T}, s{S_FO}")
    B(f"v_min_u32 v{VF0}, 1, v2")
    B(f"v_lshl_add_u32 v{VFI}, v{VF0}, 31, s{S_T + 2}")
    B(f"s_lshl_b32 s{S_GL}, s{S_J}, 4")
    B(f"s_add_u32 s{S_T + 2}, s{S_T}, s{S_GL}")
    B(f"v_lshl_add_u32 v{VF0}, v{VF0}, 31, s{S_T + 2}")
    B(f"v_lshlrev_b32 v{V4}, 2, v2")
    B(f"v_bfe_u32 v{VG8O}, v2, 1, 1")
    B(f"v_lshl_add_u32 v{VG8O}, v{VG8O}, 4, v{TP}")
    B(f"v_mul_u32_u24 v{VG8O}, 1152, v{VG8O}")
    B(f"v_and_b32 v{TP + 3}, 1, v2")
    B(f"v_lshl_add_u32 v{VG8O}, v{TP + 3}, 2, v{VG8O}")
    B(f"s_mul_i32 s{S_OO}, s{S_TT}, 73728")
    B(f"s_and_b32 s{S_T}, s{S_J}, 1")
    B(f"s_mul_i32 s{S_T}, s{S_T}, 36864")
    B(f"s_add_u32 s{S_G8O}, s{S_OO}, s{S_T}")
    B(f"s_lshr_b32 s{S_T}, s{S_J}, 1")
    B(f"s_lshl_b32 s{S_T}, s{S_T}, 2")
    B(f"s_add_u32 s{S_T}, s{S_T}, s{S_WAVE}")
    B(f"s_lshl_b32 s{S_T}, s{S_T}, 3")
    B(f"s_add_u32 s{S_G8O}, s{S_G8O}, s{S_T}")
    B(f"s_lshl_b32 s{S_T}, s{S_J}, 7")
    B(f"s_add_u32 s{S_OO}, s{S_OO}, s{S_T}")
    B(f"s_lshl_b32 s{S_T}, s{S_WAVE}, 5")
    B(f"s_add_u32 s{S_OO}, s{S_OO}, s{S_T}")
    B(f"v_and_b32 v{VO}, 15, v2")
    B(f"v_mul_u32_u24 v{VO}, 1152, v{VO}")
    B(f"v_lshrrev_b32 v{TP + 3}, 4, v2")
    B(f"v_lshl_add_u32 v{VO}, v{TP + 3}, 3, v{VO}")
    B(f"v_lshrrev_b32 v{TP + 3}, 3, v2")
    B(f"v_min_u32 v{TP + 3}, 1, v{TP + 3}")
    B(f"v_mul_u32_u24 v{VG8}, 144, v2")
    B(f"v_lshl_add_u32 v{VG8}, v{TP + 3}, 31, v{VG8}")
    B(f"v_mov_b32 v{VONE}, 1")
    B(f"s_cmp_eq_u32 s{S_J}, 0")
    B(f"s_cselect_b32 s{S_FAC}, 1.0, 0")
    for i in range(4):
        B(f"v_mov_b32 v{PK + i}, {ONES}")
    B(f"s_mov_b32 s{S_MA}, 0xaaaaaaaa")
    B(f"s_mov_b32 s{S_MA + 1}, 0xaaaaaaaa")
    B(f"s_mov_b32 s{S_MC}, 0xcccccccc")
    B(f"s_mov_b32 s{S_MC + 1}, 0xcccccccc")
    B(f"s_mov_b32 s{S_MD}, 0x00f0000f")
    B(f"s_mov_b32 s{S_MD + 1}, 0xf0000f00")
    A.ext(setup.lines)
    A(f"s_mov_b32 s{S_SP}, 400000")
    A(f"s_and_b32 s{S_T}, s2, 7")
    A(f"s_lshl_b32 s{S_T}, s{S_T}, 7")
    A(f"s_add_u32 s{S_T}, s{S_T}, {CNT}")
    A(f"v_lshl_add_u32 v{UX}, v2, 10, s{S_T}")
    A(f"s_bfe_u32 s{S_T}, s2, 0x40003")
    A(f"s_lshl_b32 s{S_T}, s{S_T}, 10")
    A(f"s_add_u32 s{S_T}, s{S_T}, {CNT}")
    A(f"v_lshl_add_u32 v{UX + 1}, v2, 7, s{S_T}")
    A("s_waitcnt vmcnt(0)")
    stamp(A, 1, 1)
    A("s_barrier")
    A(f"s_cmp_lg_u32 s{S_WAVE}, 0")
    A("s_cbranch_scc1 L_s2_done")
    cleared(A, VFL, S_SP)
    A("s_mov_b64 exec, 0xffff")
    A(f"buffer_atomic_add v{VONE}, v{UX}, {ws}, 0 offen sc1")
    A("s_mov_b64 exec, 0xff")
    A("L_s2_poll:")
    A(f"v_mov_b32 v{VFL}, 0")
    A(f"buffer_atomic_add v{VFL}, v{UX + 1}, {ws}, 0 offen sc0 sc1")
    A(f"s_sub_u32 s{S_SP}, s{S_SP}, 1")
    A("s_waitcnt vmcnt(0)")
    A(f"v_cmp_ne_u32 vcc, 32, v{VFL}")
    A("s_cbranch_vccz L_s2_ok")
    A(f"s_cmp_lg_u32 s{S_SP}, 0")
    A("s_cbranch_scc1 L_s2_poll")
    A("L_s2_ok:")
    A("s_mov_b64 exec, -1")
    A("L_s2_done:")
    A("s_waitcnt lgkmcnt(0)")
    A("s_barrier")
    stamp(A, 2, 1)
    for ks in range(18):
        A(f"s_add_u32 m0, s{S_T + 1}, {4096 * ks}")
        A(f"s_add_u32 s{S_T}, s{S_CUR}, {4096 * ks}")
        A(f"buffer_load_dwordx4 v{VW}, {ws}, s{S_T} offen sc1 lds")
        vm.issue("dma")
    for _ in range(cfg["LA1"] - 2):
        A(wload(-1))
    A.ext(vm.wait("dma"))
    A("s_barrier")
    stamp(A, 3, 1)

    def hread(ks):
        out = []
        if ks == 16:
            out += [f"v_add_u32 v{HA + m}, 65536, v{HA + m}" for m in range(4)]
        for m in range(4):
            for h in range(2):
                off = (4096 * ks + 2048 * h) & 0xffff
                out.append(("lg", ("h", ks), f"ds_read_b64_tr_b16 {act(m, ks, 2, 2 * h)}, v{HA + m} offset:{off}"))
        return out

    def Hread(ks):
        r, off = (HR, 4096 * ks) if ks < 9 else (HR + 1, 4096 * (ks - 9))
        return [("lg", ("H", ks), f"ds_read_b128 {act(m, ks)}, v{r} offset:{off + 1024 * m}") for m in range(4)]

    def ep1():
        out = []
        for m in range(4):
            out += [f"v_cvt_pk_bf16_f32 v{PK + 2 * m + h}, v{FIN + 4 * m + 2 * h}, v{FIN + 4 * m + 2 * h + 1}" for h in range(2)]
            out += [f"v_pk_max_i16 v{PK + 2 * m + h}, v{PK + 2 * m + h}, 0" for h in range(2)]
            out.append(("lg", "Hw", f"ds_write_b64 v{HW + m}, {v(PK + 2 * m, 2)}"))
            out.append(f"v_add_u32 v{HW + m}, 8192, v{HW + m}")
        return out

    def hres_read():
        return [("lg", "hres", f"ds_read_b64_tr_b16 {v(LAND + 2 * m, 2)}, v{HA + m}") for m in range(4)]

    def unpack_to_sum():
        out = [("lgw", "hres")]
        for i in range(8):
            out += [f"v_lshlrev_b32 v{SUM + 2 * i}, 16, v{LAND + i}", f"v_and_b32 v{SUM + 2 * i + 1}, 0xffff0000, v{LAND + i}"]
        return out

    def scale_pack(m, add):
        out = []
        for i in range(4):
            r = FIN + 4 * m + i
            out.append(f"v_fma_f32 v{r}, v{r}, v{RS + m}, v{SUM + 4 * m + i}" if add else f"v_mul_f32 v{r}, v{r}, v{RS + m}")
        return out + [f"v_cvt_pk_bf16_f32 v{PK + 2 * m + h}, v{FIN + 4 * m + 2 * h}, v{FIN + 4 * m + 2 * h + 1}" for h in range(2)]

    def rot(sr, delta, mask):
        op = "s_add_u32" if delta > 0 else "s_sub_u32"
        return [f"{op} s{sr}, s{sr}, {abs(delta)}", f"s_and_b32 s{sr}, s{sr}, {mask}"]

    def ep2(b):
        out = [f"s_mov_b32 s{S_T + 2}, {8 * 65536}"] if b == 0 else rot(S_PO, 65536, 0x7ffff)
        sr = S_T + 2 if b == 0 else S_PO
        for m in range(4):
            out += scale_pack(m, b == 0)
            if m & 1:
                out.append(("vm", ("pst", b), f"buffer_store_dwordx4 {v(PK + 4 * (m >> 1), 4)}, v{VPO}, {ws}, s{sr} offen offset:{1024 * (m >> 1)} sc1"))
        return out

    def flag_st(b):
        return ([] if b == 0 else rot(S_FO, 128, 0x3ff)) + \
            [("vmw", ("pst", b)), ("vm", None, f"buffer_atomic_add v{VONE}, v{VF0}, {ws}, s{S_FO} offen sc1")]
    slow = []

    def poll(b):
        ad = f"v{VG8}, {ws}, s{S_G8F}" if b == 0 else f"v{VFI}, {ws}, s{S_GL}"
        return f"buffer_atomic_add v{VFL}, {ad} offen sc0 sc1"

    def flag_ld(b):
        return ([] if b == 0 else rot(S_GL, -16, 0x7f)) + [f"v_mov_b32 v{VFL}, 0", ("vm", ("fl", b), poll(b))]

    def check(b, tag):
        test = [f"v_cmp_ne_u32 vcc, 1, v{VFL}", f"s_and_b32 s{S_GC}, vcc_lo, {0xff if b == 0 else 1}"]
        code = [f"L_k3_slow{tag}:", f"s_cmp_eq_u32 s{S_SP}, 0", f"s_cbranch_scc1 L_k3_back{tag}", f"s_sub_u32 s{S_SP}, s{S_SP}, 1",
                f"v_mov_b32 v{VFL}, 0", poll(b), "s_waitcnt vmcnt(0)"] + test + \
               [f"s_cbranch_scc1 L_k3_slow{tag}", f"s_branch L_k3_back{tag}"]
        slow.append(code)
        return [("vmw", ("fl", b)), test[0], ("seq", [test[1], f"s_cbranch_scc1 L_k3_slow{tag}", f"L_k3_back{tag}:"])]

    def data_ld(b, dst=LAND):
        if b == 0:
            out = []
            for sj in range(8):
                out += [f"s_add_u32 s{S_T + 3}, s{S_G8D}, {8 * 65536 + sj * 8192}",
                        ("vm", ("dat", b), f"buffer_load_dword v{dst + sj}, v{V4}, {ws}, s{S_T + 3} offen sc1")]
            return out
        return rot(S_RO, -8192, 0xffff) + \
            [("vm", ("dat", b), f"buffer_load_dwordx4 {v(dst + 4 * h, 4)}, v{VRI}, {ws}, s{S_RO} offen offset:{1024 * h} sc1") for h in range(2)]

    def accum(b, src=LAND):
        out = [("vmw", ("dat", b))]
        for i in range(8):
            out += [f"v_lshlrev_b32 v{UX + 2 * i}, 16, v{src + i}", f"v_and_b32 v{UX + 2 * i + 1}, 0xffff0000, v{src + i}"]
        if b == 0:
            for w in (8, 4, 2):
                out += [f"v_add_f32 v{UX + i}, v{UX + i}, v{UX + w + i}" for i in range(w)]
            return out + [f"v_cvt_pk_bf16_f32 v{SQ}, v{UX}, v{UX + 1}",
                          ("vm", None, f"buffer_store_dword v{SQ}, v{VG8O}, {so}, s{S_G8O} offen offset:1024")]
        return out + [f"v_add_f32 v{SUM + i}, v{SUM + i}, v{UX + i}" for i in range(16)]

    def stats_fin():
        return [f"v_cndmask_b32 v{SQ}, v{SQ}, v{SQ + 1}, s[{S_MA}:{S_MA + 1}]",
                f"v_cndmask_b32 v{SQ + 2}, v{SQ + 2}, v{SQ + 3}, s[{S_MA}:{S_MA + 1}]",
                f"v_mul_f32 v{SM}, {INV576}, v{SM}",
                f"v_cndmask_b32 v{SQ}, v{SQ}, v{SQ + 2}, s[{S_MC}:{S_MC + 1}]",
                f"v_and_b32 v{TP}, 15, v2", f"v_mul_f32 v{SQ}, {INV576}, v{SQ}",
                f"v_lshlrev_b32 v{TP}, 2, v{TP}", f"v_fma_f32 v{SQ}, -v{SM}, v{SM}, v{SQ}",
                f"v_add_u32 v{TP}, {STB}, v{TP}", f"v_max_f32 v{SQ}, 0, v{SQ}",
                f"s_lshl_b32 s{S_T}, s{S_WAVE}, 6", f"v_add_f32 v{SQ}, {EPS}, v{SQ}",
                f"v_add_u32 v{TP + 1}, s{S_T}, v{TP}", f"v_rsq_f32 v{SQ}, v{SQ}",
                f"v_add_u32 v{TP + 2}, 256, v{TP + 1}",
                f"v_cndmask_b32 v{TP + 1}, v{TP + 2}, v{TP + 1}, s[{S_MD}:{S_MD + 1}]",
                ("lg", "st", f"ds_write_b32 v{TP + 1}, v{SQ}")]

    def put(out, it):
        if isinstance(it, str):
            out.append(it)
        elif it[0] == "lg":
            lg.issue(it[1])
            out.append(it[2])
        elif it[0] == "vm":
            vm.issue(it[1])
            out.append(it[2])
        elif it[0] == "lgw":
            out.extend(lg.wait(it[1]))
        elif it[0] == "vmw":
            out.extend(vm.wait(it[1]))
        elif it[0] == "seq":
            out.extend(it[1])
        elif it[0] == "bar":
            out.extend(lg.wait(it[1]) if it[1] else [])
            out.append("s_barrier")

    def step(n, la, head=(), streams=(), pre=None, gram=False, prei=None):
        out, pre = [], pre or {}
        sts = [[st, rate, list(items)] for st, rate, items in streams]
        if STEPPROF:
            out.append(f"s_memtime s[{32 + 2 * n}:{33 + 2 * n}]")
        out.append(f"s_mov_b32 s{S_CUR}, s{S_NXT}")
        for it in head:
            put(out, it)
        seen, left = set(), {m: 18 for m in range(4)}
        for p in range(9):
            f0 = 18 * n + 2 * p
            for it in pre.get(p, ()):
                put(out, it)
            out.extend(vm.wait(("w", f0 + 1), force=True))
            ms = range(4) if p % 2 == 0 else range(3, -1, -1)
            seq = [(2 * p + (d if i % 2 == 0 else 1 - d), m) for i, m in enumerate(ms) for d in range(2)]
            for i, (ks, m) in enumerate(seq):
                for it in (prei or {}).get(8 * p + i, ()):
                    put(out, it)
                left[m] -= 1
                d = FIN if left[m] == 0 else ACC
                c = v(ACC + 4 * m, 4) if m in seen else "0"
                seen.add(m)
                out.append(f"v_mfma_f32_16x16x32_bf16 {v(d + 4 * m, 4)}, {v(WR + 4 * ks, 4)}, {act(m, ks)}, {c}")
                if i in (1, 5) and nx[0] < min(324, f0 + la - (1 if i == 1 else 0)):
                    out.append(wload(n))
                idx = 8 * p + i
                for stt in sts:
                    if idx >= stt[0]:
                        k = 0
                        while k < stt[1] and stt[2]:
                            it = stt[2].pop(0)
                            put(out, it)
                            if isinstance(it, str) or it[0] not in ("lgw", "vmw"):
                                k += 1
            if gram:
                for ks in (2 * p, 2 * p + 1):
                    out.append(f"v_mfma_f32_16x16x32_bf16 {v(SQ, 4)}, {act(0, ks)}, {act(0, ks)}, {'0' if ks == 0 else v(SQ, 4)}")
                for ks in (2 * p, 2 * p + 1):
                    out.append(f"v_mfma_f32_16x16x32_bf16 {v(SM, 4)}, {v(PK, 4)}, {act(0, ks)}, {'0' if ks == 0 else v(SM, 4)}")
        for stt in sts:
            assert not stt[2], (n, stt)
        return out

    LA1, LA2, EP = cfg["LA1"], cfg["LA2"], cfg["ep"]
    nextw1 = [f"s_add_u32 s{S_NXT}, s{S_NXT}, 73728"]
    nextw2 = [f"s_add_u32 s{S_N}, s{S_N}, 1", f"s_and_b32 s{S_N}, s{S_N}, 7", f"s_mul_i32 s{S_T}, s{S_N}, 73728",
              f"s_add_u32 s{S_NXT}, s{S_W2B}, s{S_T}"]
    steps, pro = [], []
    groups = []
    for p in range(9):
        for m in (range(4) if p % 2 == 0 else range(3, -1, -1)):
            g = []
            if p == 8:
                g.append(f"v_add_u32 v{HA + m}, 65536, v{HA + m}")
            for ks in (2 * p, 2 * p + 1):
                for h in range(2):
                    off = (4096 * ks + 2048 * h) & 0xffff
                    g.append(("lg", ("h", len(groups)), f"ds_read_b64_tr_b16 {act(m, ks, 2, 2 * h)}, v{HA + m} offset:{off}"))
            groups.append(g)
    for g in groups[:4]:
        for it in g:
            put(pro, it)
    A.ext(pro)
    steps.append(step(0, LA1, head=nextw1, gram=True,
                      streams=[(2 * q, 3, groups[q + 4]) for q in range(32)],
                      prei={2 * q: [("lgw", ("h", q))] for q in range(36)}))
    steps.append(step(1, LA1, head=nextw1, streams=[(EP, 1, ep1() + stats_fin())]))
    for n in range(2, 8):
        steps.append(step(n, LA1, head=nextw1, streams=[(EP, 1, ep1())]))
    hsl = {8: {}, 9: {}}
    for q in range(8):
        for k, it in enumerate(Hread(2 * q) + Hread(2 * q + 1)):
            g = 8 + cfg["hs"] * q + (k * cfg["hs"]) // 8
            hsl[8 + g // 72].setdefault(g % 72, []).append(it)
    hd = [f"s_add_u32 s{S_NXT}, s{S_W2B}, {8 * 73728}", f"s_mov_b32 s{S_N}, s{S_J}", f"s_mov_b32 s{S_SP}, 400000", ("bar", "Hw")]
    rsr = [("lg", "rs", f"ds_read_b32 v{RS + m}, v{TP} offset:{64 * m}") for m in range(4)]
    steps.append(step(8, LA1, head=hd, pre={7: [("bar", "Hw")]}, prei=hsl[8], streams=[(0, 1, rsr), (EP, 1, ep1())]))
    fixa = [f"s_lshl_b32 s{S_T + 1}, s{S_WAVE}, 5"] + [f"v_xor_b32 v{HA + m}, s{S_T + 1}, v{HA + m}" for m in range(4)]
    fixa += [f"s_lshl_b32 s{S_T + 1}, s{S_WAVE}, 11"] + [f"v_add_u32 v{HA + m}, s{S_T + 1}, v{HA + m}" for m in range(4)]
    scale = [f"v_mul_f32 v{SUM + i}, s{S_FAC}, v{SUM + i}" for i in range(16)]
    pre = {p: [("lgw", ("H", 2 * p + 1))] for p in range(9)}
    pre[5] = pre[5] + [("bar", "Hw")]
    own = [f"s_lshl_b32 s{S_T + 1}, s{S_J}, 13", f"s_sub_u32 s{S_T + 1}, s{S_T + 1}, 65536"]
    own += [f"v_add_u32 v{HA + m}, s{S_T + 1}, v{HA + m}" for m in range(4)]
    assert cfg["fl"] + 2 <= cfg["ck"] <= cfg["fl"] + 70 and cfg["ck"] + 10 <= cfg["ac"] <= cfg["ck"] + 64
    ev = {n: [] for n in range(9)}
    late = []
    for b in range(8):
        for kind in ("fs", "fl", "ck", "ac"):
            g = 72 * (b + 1) + cfg[kind]
            (ev[g // 72] if g // 72 <= 7 else late).append((g % 72 if g // 72 <= 7 else g, kind, b))

    def ev_items(kind, b, tag, dst=LAND):
        return {"fs": lambda: flag_st(b), "fl": lambda: flag_ld(b), "ck": lambda: check(b, tag) + data_ld(b, dst),
                "ac": lambda: accum(b, dst)}[kind]()
    for n in range(8):
        st = []
        if n == 0:
            st = [(0, 2, fixa + hres_read()), (EP, 1, ep1()), (40, 1, Hread(16) + Hread(17)), (48, 2, unpack_to_sum() + scale)]
        else:
            st = [(EP, cfg["epr"], ep2(n - 1) + (unpack_to_sum() if n == 1 else []))]
            if n == 1:
                st.insert(0, (0, 2, own + hres_read()))
        for idx, kind, b in sorted(ev[n]):
            st.append((idx, 2, ev_items(kind, b, "@")))
        body = step(9 + n, LA2, head=(stamp_item(4) if n == 0 else []) + nextw2, streams=st,
                    pre=pre if n == 0 else None, prei=hsl[9] if n == 0 else None)
        steps.append(body)
    late.sort()
    pend = {k: [b for _, kk, b in late if kk == k] for k in ("fs", "fl", "ck", "ac")}
    land = {}
    free = [WR + 8 * i for i in range(4)]
    seq_in = []
    for b in pend["ac"]:
        if b not in pend["ck"]:
            land[b] = LAND
    first = True
    for b in pend["ck"]:
        land[b] = free.pop(0)
        seq_in.append((["fl"] if b in pend["fl"] else []) + ["ck"])
    st = [(6, 2, ep2(7))]
    for b in pend["fs"]:
        st.append((cfg.get("t8fs", 68) if b == 7 else 2, 2, flag_st(b)))
    pos = {5: cfg.get("t8a", 24), 6: cfg.get("t8b", 44)}
    tail_items = []
    for b, kinds in zip(pend["ck"], seq_in):
        for kind in kinds:
            its = ev_items(kind, b, f"t{b}", land[b])
            if b == 7:
                tail_items += its
            else:
                p0 = pos.get(b, 20) + (18 if (kind == "ck" and "fl" in kinds) else 0)
                st.append((p0, 2, its))
    acc_tail = []
    for b in pend["ac"]:
        if land[b] == LAND:
            st.append((cfg.get("t8c", 26), 2, accum(b, LAND)))
        else:
            acc_tail.append(b)
    st.sort(key=lambda x: x[0])
    steps.append(step(17, LA2, head=stamp_item(5), streams=st))
    uniq, k = [], 0
    site = [c for c in slow if "@" in c[0]]
    slow[:] = [c for c in slow if "@" not in c[0]]
    prev = None
    for i, body in enumerate(steps):
        if any("@" in x for x in body):
            code = site[k]
            k += 1
            if body != prev:
                lab = f"s{i}"
                slow.append([x.replace("@", lab) for x in code])
            prev = body
            steps[i] = [x.replace("@", lab) for x in body]
    i = 0
    while i < len(steps):
        e = i
        while e + 1 < len(steps) and steps[e + 1] == steps[i]:
            e += 1
        if e > i:
            A(f"s_mov_b32 s{S_LP}, {e - i + 1}")
            A(f"L_k3_loop{i}:")
            body = list(steps[i])
            cut = len(body)
            while cut > len(body) - 2 and body[cut - 1].startswith(("v_mfma", "buffer_", "v_add", "v_and", "v_lsh")):
                cut -= 1
            A.ext(body[:cut])
            A(f"s_sub_u32 s{S_LP}, s{S_LP}, 1")
            A(f"s_cmp_lg_u32 s{S_LP}, 0")
            A.ext(body[cut:])
            A(f"s_cbranch_scc1 L_k3_loop{i}")
        else:
            A.ext(steps[i])
        i = e + 1
    tail = []
    fin = [f"v_fma_f32 v{SUM + i}, v{FIN + i}, v{RS + i // 4}, v{SUM + i}" for i in range(16)]
    early = [it for b in acc_tail[:-1] for it in accum(b, land[b])]
    for it in fin + tail_items[:4] + early + tail_items[4:] + accum(7, land[7]):
        put(tail, it)
    for m in range(4):
        tail += [f"v_cvt_pk_bf16_f32 v{PK + 2 * m + h}, v{SUM + 4 * m + 2 * h}, v{SUM + 4 * m + 2 * h + 1}" for h in range(2)]
        tail += [f"buffer_store_dwordx2 {v(PK + 2 * m, 2)}, v{VO}, {so}, s{S_OO} offen", f"s_add_u32 s{S_OO}, s{S_OO}, 18432"]
    if STEPPROF:
        A("s_memtime s[68:69]")
    A.ext(tail)
    stamp(A, 6, 1)
    if STEPPROF:
        A("s_waitcnt lgkmcnt(0)")
        A("v_lshrrev_b32 v1, 6, v0")
        A("v_lshlrev_b32 v1, 7, v1")
        A("s_lshl_b32 s70, s2, 9")
        A(f"s_add_u32 s70, s70, {PROF_OFF + (8 << 20)}")
        A("s_mov_b32 s10, 0x10000000")
        for n in range(19):
            A(f"v_mov_b32 v4, s{32 + 2 * n}")
            A(f"buffer_store_dword v4, v1, {ws}, s70 offen offset:{4 * n}")
        A(f"v_mov_b32 v4, s{S_SP}")
        A(f"buffer_store_dword v4, v1, {ws}, s70 offen offset:{4 * 19}")
    prof_flush(A, 0)
    A("L_exit:")
    A("s_endpgm")
    for code in slow:
        A.ext(code)
```

```python
from asmlib import *

NAME = "sequential_preLN__ssm_conv_s4__dense_activation_relu__prompt"

KA_X, KA_ARE, KA_AIM, KA_BRE, KA_BIM, KA_CRE, KA_CIM, KA_LDT, KA_DSK = 0, 8, 16, 24, 32, 40, 48, 56, 64
KA_W1, KA_W2, KA_OUT, KA_DBG, KA_WS = 80, 88, 96, 104, 112

X_BYTES = 2359296
W_BYTES = 5308416

UR = 0
KT = UR + 4718592
HT = KT + 576 * 3072
W1S = HT + X_BYTES
W2S = W1S + W_BYTES
PP = W2S + W_BYTES
ST = PP + 8 * X_BYTES
CNT = ST + 16384
FL = CNT + 16384
CN3 = FL + 32768
WS_END = CN3 + 2048

R3B, R2B, RD0B, RD1B = 0, 256, 720, 1826

LOG2E = 0x3FB8AA3B
INV2PI = 0x3E22F983
INV576 = 0x3AE38E39
EPS = 0x3727C5AC
ONES = 0x3F803F80


def srd(A, d, p, nbytes):
    A(f"s_mov_b32 s{d}, s{p}")
    A(f"s_and_b32 s{d + 1}, s{p + 1}, 0xffff")
    A(f"s_mov_b32 s{d + 2}, {nbytes}")
    A(f"s_mov_b32 s{d + 3}, 0x20000")


class Cnt:
    def __init__(self, name, mx):
        self.name, self.mx, self.n, self.tags, self.done = name, mx, 0, {}, 0

    def issue(self, tag=None):
        self.n += 1
        if tag is not None:
            self.tags[tag] = self.n

    def wait(self, tag, force=False):
        pos = self.tags[tag]
        if pos <= self.done and not force:
            return []
        k = min(self.n - pos, self.mx)
        self.done = max(self.done, self.n - k)
        return [f"s_waitcnt {self.name}({k})"]

    def drain(self):
        self.done = self.n
        return [f"s_waitcnt {self.name}(0)"]


def kernel_head(A, name):
    A(f".globl {name}")
    A(".p2align 8")
    A(f".type {name},@function")
    A(f"{name}:")


def descriptor(name, vgpr, acc, sgpr=96):
    return f""".p2align 6
.amdhsa_kernel {name}
  .amdhsa_next_free_vgpr {vgpr}
  .amdhsa_next_free_sgpr {sgpr}
  .amdhsa_accum_offset {acc}
  .amdhsa_group_segment_fixed_size 0
  .amdhsa_kernarg_size 120
  .amdhsa_user_sgpr_count 2
  .amdhsa_user_sgpr_kernarg_segment_ptr 1
  .amdhsa_system_sgpr_workgroup_id_x 1
.end_amdhsa_kernel
"""


PROF = False
PROF_OFF = 208 << 20
S_PR = 84
PROF_SEL = 0


def stamp(A, i, part=0):
    if PROF and (part == PROF_SEL or i in (0, 7)):
        A(f"s_memrealtime s[{S_PR + 2 * i}:{S_PR + 2 * i + 1}]")


def stamp_item(i, part=1):
    return [f"s_memrealtime s[{S_PR + 2 * i}:{S_PR + 2 * i + 1}]"] if PROF and part == PROF_SEL else []


def prof_clear(A):
    if PROF:
        for i in range(1, 8):
            A(f"s_mov_b32 s{S_PR + 2 * i}, 0")


def prof_flush(A, kern):
    if not PROF:
        return
    A("s_waitcnt vmcnt(0)")
    stamp(A, 7)
    A(f"s_load_dwordx2 s[100:101], s[0:1], {KA_WS}")
    A("s_waitcnt lgkmcnt(0)")
    A(f"s_add_u32 s100, s100, {PROF_OFF + kern * (1 << 20)}")
    A("s_addc_u32 s101, s101, 0")
    A("v_lshrrev_b32 v1, 6, v0")
    A("v_lshlrev_b32 v1, 5, v1")
    A("s_lshl_b32 s2, s2, 8")
    A("v_add_u32 v1, s2, v1")
    for h in range(2):
        for i in range(4):
            A(f"v_mov_b32 v{4 + i}, s{S_PR + 8 * h + 2 * i}")
        A(f"global_store_dwordx4 v1, v[4:7], s[100:101] offset:{16 * h}")
        A("s_waitcnt vmcnt(0)")
```

```python
from common import *

STG_ROW = 528
STG_WAVE = 56 * STG_ROW
K1_RED = 4 * STG_WAVE
K1_LDS = K1_RED + 2048
K2_RED = 36864
K2_LDS = K2_RED + 2048

S_WAVE = 3
S_WS = 8
S_X = 12
S_D = 16
S_W = 20
S_CH = 24
S_T = 26
S_P = 32
S_ST = 64


def wave_id(A):
    A("v_lshrrev_b32 v1, 6, v0")
    A(f"v_readfirstlane_b32 s{S_WAVE}, v1")
    A("v_and_b32 v2, 63, v0")


def channel_of_wave(A):
    A(f"s_lshr_b32 s{S_T}, s2, 1")
    A(f"s_lshl_b32 s{S_T}, s{S_T}, 3")
    A(f"s_and_b32 s{S_T + 1}, s2, 1")
    A(f"s_add_u32 s{S_T}, s{S_T}, s{S_T + 1}")
    A(f"s_lshl_b32 s{S_T + 1}, s{S_WAVE}, 1")
    A(f"s_add_u32 s{S_CH}, s{S_T}, s{S_T + 1}")


LX, LD, LV, LF, LU, LO_ = 4, 12, 16, 32, 48, 64


def ln_issue(A):
    A("v_lshlrev_b32 v3, 2, v0")
    A("v_mov_b32 v13, 0x80000000")
    A("v_cmp_gt_u32 vcc, 288, v0")
    A("v_cndmask_b32 v3, v13, v3, vcc")
    A(f"s_mul_i32 s{S_T}, s2, 9216")
    A(f"s_add_u32 s{S_T + 1}, s{S_T}, 4608")
    for r in range(8):
        A(f"buffer_load_dword v{LX + r}, v3, s[{S_X}:{S_X + 3}], s{S_T + r // 4} offen offset:{(r % 4) * 1152}")
    A(f"buffer_load_dword v{LD}, v3, s[{S_D}:{S_D + 3}], 0 offen")


def ln_compute(A, red, store_flags=""):
    A(f"s_mov_b32 s{S_T}, {ONES}")
    for r in range(8):
        A(f"v_dot2_f32_bf16 v{LV + 2 * r}, v{LX + r}, s{S_T}, 0")
        A(f"v_dot2_f32_bf16 v{LV + 2 * r + 1}, v{LX + r}, v{LX + r}, 0")
    for r in range(2):
        A(f"v_lshlrev_b32 v{LF + 2 * r}, 16, v{LX + r}")
        A(f"v_and_b32 v{LF + 2 * r + 1}, 0xffff0000, v{LX + r}")
    for i in range(8):
        A(f"v_permlane32_swap_b32 v{LV + i}, v{LV + 8 + i}")
    for i in range(8):
        A(f"v_add_f32 v{LV + i}, v{LV + i}, v{LV + 8 + i}")
    for i in range(4):
        A(f"v_permlane16_swap_b32 v{LV + i}, v{LV + 4 + i}")
    for i in range(4):
        A(f"v_add_f32 v{LV + i}, v{LV + i}, v{LV + 4 + i}")
    for sh in (8, 4, 2, 1):
        for i in range(4):
            A(f"v_add_f32_dpp v{LV + i}, v{LV + i}, v{LV + i} row_ror:{sh} row_mask:0xf bank_mask:0xf")
    A("v_and_b32 v14, 0x1f0, v0")
    A(f"v_add_u32 v14, {red}, v14")
    A("s_mov_b32 exec_lo, 0x00010001")
    A("s_mov_b32 exec_hi, 0x00010001")
    A(f"ds_write_b128 v14, v[{LV}:{LV + 3}]")
    A("s_mov_b64 exec, -1")
    A("v_and_b32 v14, 7, v0")
    A("v_lshlrev_b32 v14, 3, v14")
    A(f"v_add_u32 v14, {red}, v14")
    A("s_waitcnt lgkmcnt(0)")
    A("s_barrier")
    for w in range(5):
        A(f"ds_read_b64 v[{LV + 2 * w}:{LV + 2 * w + 1}], v14 offset:{64 * w}")
    for r in range(2, 8):
        A(f"v_lshlrev_b32 v{LF + 2 * r}, 16, v{LX + r}")
        A(f"v_and_b32 v{LF + 2 * r + 1}, 0xffff0000, v{LX + r}")
    A(f"v_and_b32 v{LD + 1}, 0xffff0000, v{LD}")
    A(f"v_lshlrev_b32 v{LD}, 16, v{LD}")
    A(f"s_lshr_b32 s{S_T + 1}, s2, 1")
    A(f"s_and_b32 s{S_T + 1}, s{S_T + 1}, 7")
    A("v_and_b32 v15, 3, v0")
    A(f"v_xor_b32 v15, s{S_T + 1}, v15")
    A("v_lshlrev_b32 v15, 4, v15")
    A("v_lshrrev_b32 v1, 2, v0")
    A("v_lshl_add_u32 v15, v1, 8, v15")
    A("v_and_b32 v1, 0x80000000, v3")
    A("v_or_b32 v15, v15, v1")
    A("v_xor_b32 v14, 64, v15")
    A(f"s_mul_i32 s{S_T + 2}, s2, 18432")
    A("s_waitcnt lgkmcnt(0)")
    A(f"v_pk_add_f32 v[{LV}:{LV + 1}], v[{LV}:{LV + 1}], v[{LV + 2}:{LV + 3}]")
    A(f"v_pk_add_f32 v[{LV + 4}:{LV + 5}], v[{LV + 4}:{LV + 5}], v[{LV + 6}:{LV + 7}]")
    A(f"v_pk_add_f32 v[{LV}:{LV + 1}], v[{LV}:{LV + 1}], v[{LV + 8}:{LV + 9}]")
    A(f"v_pk_add_f32 v[{LV}:{LV + 1}], v[{LV}:{LV + 1}], v[{LV + 4}:{LV + 5}]")
    A(f"v_mul_f32 v{LV}, {INV576}, v{LV}")
    A(f"v_mul_f32 v{LV + 1}, {INV576}, v{LV + 1}")
    A(f"v_fma_f32 v{LV + 1}, -v{LV}, v{LV}, v{LV + 1}")
    A(f"v_max_f32 v{LV + 1}, 0, v{LV + 1}")
    A(f"v_add_f32 v{LV + 1}, {EPS}, v{LV + 1}")
    A(f"v_rsq_f32 v{LV + 1}, v{LV + 1}")
    A(f"v_mul_f32 v{LV}, -v{LV}, v{LV + 1}")
    for r in range(8):
        A(f"v_readlane_b32 s{S_ST + 2 * r}, v{LV + 1}, {r}")
    for r in range(8):
        A(f"v_readlane_b32 s{S_ST + 2 * r + 1}, v{LV}, {r}")
    for r in range(8):
        sp = s(S_ST + 2 * r, 2)
        A(f"v_pk_fma_f32 {v(LU + 2 * r, 2)}, {v(LF + 2 * r, 2)}, {sp}, {sp} op_sel:[0,0,1] op_sel_hi:[1,0,1]")
    for p in range(2):
        for k in range(4):
            A(f"v_cvt_pk_bf16_f32 v{LO_ + 4 * p + k}, v{LU + 4 * k + p}, v{LU + 4 * k + 2 + p}")
        A(f"buffer_store_dwordx4 {v(LO_ + 4 * p, 4)}, v15, s[{S_WS}:{S_WS + 3}], s{S_T + 2} offen offset:{128 * p} {store_flags}")
    for r in range(8):
        A(f"v_pk_fma_f32 {v(LF + 2 * r, 2)}, {v(LU + 2 * r, 2)}, {v(LD, 2)}, {v(LF + 2 * r, 2)}")
    for p in range(2):
        for k in range(4):
            A(f"v_cvt_pk_bf16_f32 v{LO_ + 8 + 4 * p + k}, v{LF + 4 * k + p}, v{LF + 4 * k + 2 + p}")
        A(f"buffer_store_dwordx4 {v(LO_ + 8 + 4 * p, 4)}, v14, s[{S_WS}:{S_WS + 3}], s{S_T + 2} offen offset:{128 * p} {store_flags}")


GP = 80
GZ = 88


def kgen_issue(A):
    A(f"s_lshl_b32 s{S_T + 2}, s{S_CH}, 8")
    A(f"v_lshl_add_u32 v1, v2, 2, s{S_T + 2}")
    for i in range(6):
        A(f"global_load_dword v{GP + i}, v1, s[{S_P + 2 + 2 * i}:{S_P + 3 + 2 * i}]")
    A(f"s_lshl_b32 s{S_T + 2}, s{S_CH}, 1")
    A(f"v_mov_b32 v1, s{S_T + 2}")
    A(f"global_load_ushort v{GP + 6}, v1, s[{S_P + 14}:{S_P + 15}]")
    for i in range(4):
        A(f"v_mov_b32 v{GZ + i}, 0")
    A(f"s_mul_i32 s{S_CH + 1}, s{S_CH}, 3072")
    A(f"s_add_u32 s{S_CH + 1}, s{S_CH + 1}, {KT}")
    A("v_lshlrev_b32 v1, 4, v2")
    for i in range(3):
        A(f"buffer_store_dwordx4 {v(GZ, 4)}, v1, s[{S_WS}:{S_WS + 3}], s{S_CH + 1} offen offset:{1024 * i}")
    return 10


def cmul(d, x, y):
    return [f"v_pk_mul_f32 {v(d, 2)}, {v(x, 2)}, {v(y, 2)} op_sel_hi:[1,0]",
            f"v_pk_fma_f32 {v(d, 2)}, {v(x, 2)}, {v(y, 2)}, {v(d, 2)} op_sel:[1,1,0] op_sel_hi:[0,1,1] neg_lo:[1,0,0]"]


def kgen_compute(A):
    U = 4
    DT, ADR = 16, 17
    for i in range(6):
        A(f"v_lshlrev_b32 v{U + 2 * i}, 16, v{GP + i}")
        A(f"v_and_b32 v{U + 2 * i + 1}, 0xffff0000, v{GP + i}")
    A(f"v_lshlrev_b32 v{DT}, 16, v{GP + 6}")
    A(f"v_mul_f32 v{DT}, {LOG2E}, v{DT}")
    A(f"v_exp_f32 v{DT}, v{DT}")
    A(f"s_mul_i32 s{S_T}, s{S_WAVE}, {STG_WAVE}")
    A(f"v_lshl_add_u32 v{ADR}, v2, 3, s{S_T}")
    A(f"v_cvt_pk_bf16_f32 v{DT}, v{DT}, v{DT}")
    A(f"v_and_b32 v{DT}, 0xffff0000, v{DT}")
    for i in range(4):
        A(f"v_pk_mul_f32 {v(U + 2 * i, 2)}, {v(U + 2 * i, 2)}, {v(DT, 2)} op_sel_hi:[1,0]")
    for m in range(2):
        A(f"v_mul_f32 v{U + m}, {LOG2E}, v{U + m}")
        A(f"v_mul_f32 v{U + 2 + m}, {INV2PI}, v{U + 2 + m}")
    names = ["z1", "z8", "w", "z2", "z3", "z4", "z6", "t0", "t1", "p0", "p1", "y0", "y1"]
    R = {n: 20 + 4 * i for i, n in enumerate(names)}
    TMP = 72
    for nm, l in (("z8", 8.0), ("z1", 1.0), ("w", 256.0)):
        lit = {8.0: "0x41000000", 1.0: "1.0", 256.0: "0x43800000"}[l]
        for m in range(2):
            A(f"v_mul_f32 v{TMP + m}, {lit}, v{U + m}")
            A(f"v_mul_f32 v{TMP + 2 + m}, {lit}, v{U + 2 + m}")
        for m in range(2):
            A(f"v_fract_f32 v{TMP + 2 + m}, v{TMP + 2 + m}")
        for m in range(2):
            A(f"v_exp_f32 v{TMP + m}, v{TMP + m}")
        for m in range(2):
            A(f"v_cos_f32 v{R[nm] + 2 * m}, v{TMP + 2 + m}")
            A(f"v_sin_f32 v{R[nm] + 2 * m + 1}, v{TMP + 2 + m}")
        A(f"v_pk_mul_f32 {v(R[nm], 2)}, {v(R[nm], 2)}, {v(TMP, 2)} op_sel_hi:[1,0]")
        A(f"v_pk_mul_f32 {v(R[nm] + 2, 2)}, {v(R[nm] + 2, 2)}, {v(TMP, 2)} op_sel:[0,1] op_sel_hi:[1,1]")
    for m in range(2):
        y = R["y0"] + 2 * m
        A(f"v_mul_f32 v{y}, v{U + 8 + m}, v{U + 4 + m}")
        A(f"v_mul_f32 v{y + 1}, v{U + 8 + m}, v{U + 6 + m}")
    for m in range(2):
        y = R["y0"] + 2 * m
        A(f"v_fma_f32 v{y}, -v{U + 10 + m}, v{U + 6 + m}, v{y}")
        A(f"v_fma_f32 v{y + 1}, v{U + 10 + m}, v{U + 4 + m}, v{y + 1}")
    offs = [[0, 1, 2, 3, 4, 5, 6, 7], [256, 256, 258, 260, 260, 260, 262, 264]]
    rows = {}
    for hi in range(2):
        for i in range(12):
            e = offs[hi][7 - i] if i < 8 else (520, 516, 1032, 1544)[i - 8] + 256 * hi
            rows.setdefault(e, []).append(8 * (i >> 2) + 4 * hi + (i & 3))
    PK = [76, 78, 92, 94]
    pk = [0]

    def emit(reg, rws, neg):
        d = PK[pk[0] % 4]
        pk[0] += 1
        n = "-" if neg else ""
        out = [f"v_cvt_pk_bf16_f32 v{d + m}, v{reg + 2 * m}, {n}v{reg + 2 * m + 1}" for m in range(2)]
        out += [f"ds_write_b64 v{ADR}, {v(d, 2)} offset:{r * STG_ROW}" for r in rws]
        return out

    def both(d, x, y):
        c0, c1 = cmul(R[d], R[x], R[y]), cmul(R[d] + 2, R[x] + 2, R[y] + 2)
        return [c0[0], c1[0], c0[1], c1[1]]

    xs = []
    xs.append(["v_mov_b32 v96, 0x3f80", "v_mov_b32 v97, 0x3f80"] +
              [f"ds_write_b64 v{ADR}, v[96:97] offset:{r * STG_ROW}" for r in rows[0]])
    xs.append(emit(R["z1"], rows[1], 0) + emit(R["w"], rows[256], 0))
    chain = [("z2", "z1", "z1", 2), ("p0", "w", "z8", 264), ("z3", "z2", "z1", 3), ("z4", "z2", "z2", 4),
             ("p1", "p0", "w", 520), ("t0", "w", "z2", 258), ("t1", "z4", "z1", 5), ("p0", "p1", "w", 776),
             ("z6", "z4", "z2", 6), ("t0", "z4", "z3", 7), ("p1", "p0", "w", 1032), ("t1", "w", "z4", 260),
             ("t0", "w", "z6", 262), ("p0", "p1", "w", 1288), ("z3", "t1", "w", 516), ("p1", "p0", "w", 1544),
             ("t0", "z3", "w", 772), ("p0", "p1", "w", 1800)]
    xi = iter(chain)
    for t in xs:
        A.ext(t)
    cur, nxt = "y0", "y1"
    for j in range(32):
        ops = both(nxt, cur, "z8") if j < 31 else []
        ey = emit(R[cur], [24 + j], 1)
        A.ext(ops[:2] + ey[:2] + ops[2:] + ey[2:])
        c = next(xi, None)
        if c:
            A.ext(both(c[0], c[1], c[2]))
            A.ext(emit(R[c[0]], rows[c[3]], 0))
        cur, nxt = nxt, cur
    stamp(A, 5)
    FA, FB, ACC = 100, 164, 4
    A("v_and_b32 v1, 31, v2")
    A(f"v_mul_u32_u24 v1, {STG_ROW}, v1")
    A("v_lshrrev_b32 v3, 5, v2")
    A("v_lshl_add_u32 v1, v3, 4, v1")
    A(f"v_add_u32 v1, s{S_T}, v1")
    lg = Cnt("lgkmcnt", 15)
    A.ext(lg.drain())

    def rd(k):
        lg.issue()
        lg.issue(("f", k))
        return [f"ds_read_b128 {v(FA + 4 * k, 4)}, v1 offset:{32 * k}",
                f"ds_read_b128 {v(FB + 4 * k, 4)}, v1 offset:{32 * k + 24 * STG_ROW}"]
    AHEAD = 6
    for k in range(AHEAD):
        A.ext(rd(k))
    A("v_lshlrev_b32 v20, 4, v2")
    A(f"v_sub_u32 v20, {RD0B + 1072}, v20")
    A("v_lshlrev_b32 v21, 2, v2")
    A(f"v_sub_u32 v21, {R2B + 380}, v21")
    A("v_lshlrev_b32 v22, 1, v2")
    A(f"v_sub_u32 v22, {R3B + 126}, v22")
    A("v_lshlrev_b32 v23, 1, v2")
    A(f"v_add_u32 v23, {RD0B + 58}, v23")
    for k in range(16):
        A.ext(lg.wait(("f", k)))
        c = "0" if k == 0 else v(ACC, 16)
        A(f"v_mfma_f32_32x32x16_bf16 {v(ACC, 16)}, {v(FA + 4 * k, 4)}, {v(FB + 4 * k, 4)}, {c}")
        if k + AHEAD < 16:
            A.ext(rd(k + AHEAD))
    for k in range(6):
        A(f"v_cvt_pk_bf16_f32 v{24 + k}, v{ACC + 2 * k}, v{ACC + 2 * k + 1}")
    A(f"v_readlane_b32 s{S_T + 1}, v24, 63")
    ws, so = f"s[{S_WS}:{S_WS + 3}]", f"s{S_CH + 1}"
    A(f"buffer_store_dwordx4 v[24:27], v20, {ws}, {so} offen")
    A(f"buffer_store_dwordx4 v[24:27], v20, {ws}, {so} offen offset:{RD1B - RD0B}")
    A(f"buffer_store_dword v28, v21, {ws}, {so} offen")
    A(f"buffer_store_short v29, v22, {ws}, {so} offen offset:128")
    A(f"buffer_store_short_d16_hi v29, v22, {ws}, {so} offen")
    A(f"v_mov_b32 v30, s{S_T + 1}")
    A("s_mov_b64 exec, 7")
    A(f"buffer_store_short v30, v23, {ws}, {so} offen")
    A(f"buffer_store_short v30, v23, {ws}, {so} offen offset:{RD1B - RD0B}")
    A("s_mov_b64 exec, -1")


SR = 96
S_J, S_G = 54, 55


def shuf_ids(A):
    A(f"s_sub_u32 s{S_G}, s2, 144")
    A(f"s_and_b32 s{S_J}, s{S_G}, 7")
    A(f"s_lshr_b32 s{S_G}, s{S_G}, 3")


def w2_issue(A, lab):
    VO = 80
    shuf_ids(A)
    A("v_lshrrev_b32 v1, 4, v2")
    A("v_mul_u32_u24 v1, 18432, v1")
    A("v_and_b32 v84, 15, v2")
    A(f"v_lshl_add_u32 v{VO}, v84, 3, v1")
    for i in range(1, 4):
        A(f"v_add_u32 v{VO + i}, {4608 * i}, v{VO}")
    A(f"s_mul_i32 s56, s{S_J}, {576 * 1152}")
    A(f"s_lshl_b32 s57, s{S_G}, 7")
    A("s_add_u32 s56, s56, s57")
    for n in range(4):
        if n == 3:
            A(f"s_cmp_ge_u32 s{S_WAVE}, 3")
            A(f"s_cbranch_scc1 {lab}_3")
        A(f"s_add_u32 s57, s{S_WAVE}, {5 * n}")
        A("s_lshr_b32 s58, s57, 1")
        A(f"s_mul_i32 s58, s58, {64 * 1152}")
        A("s_and_b32 s57, s57, 1")
        A("s_mul_i32 s57, s57, 2304")
        A("s_add_u32 s57, s57, s58")
        A("s_add_u32 s57, s57, s56")
        for e in range(8):
            A(f"buffer_load_dwordx2 {v(SR + 16 * n + 2 * e, 2)}, v{VO + (e & 3)}, s[{S_W}:{S_W + 3}], s57 offen offset:{(e >> 2) * 1152}")


def w2_finish(A, lab, younger):
    A("v_and_b32 v1, 15, v2")
    A("v_lshrrev_b32 v3, 2, v1")
    A("v_mul_u32_u24 v3, 18432, v3")
    A("v_and_b32 v1, 3, v1")
    A("v_lshl_add_u32 v3, v1, 6, v3")
    A("v_lshrrev_b32 v1, 4, v2")
    A("v_lshl_add_u32 v3, v1, 8, v3")
    A(f"s_mul_i32 s56, s{S_J}, 9")
    A(f"s_add_u32 s56, s56, s{S_G}")
    A("s_mul_i32 s56, s56, 73728")
    A(f"s_add_u32 s56, s56, {W2S}")
    A(f"s_lshl_b32 s57, s{S_WAVE}, 10")
    A("s_add_u32 s56, s56, s57")
    A("s_mov_b32 s58, 0x05040100")
    A("s_mov_b32 s59, 0x07060302")
    A(f"s_waitcnt vmcnt({younger})")
    stamp(A, 4)
    for n in range(4):
        if n == 3:
            A(f"s_cmp_ge_u32 s{S_WAVE}, 3")
            A(f"s_cbranch_scc1 {lab}")
        for cc in range(4):
            d = 4 + 16 * (n & 1) + 4 * cc
            for k in range(4):
                r = SR + 16 * n + 4 * k + (cc >> 1)
                A(f"v_perm_b32 v{d + k}, v{r + 2}, v{r}, s{58 + (cc & 1)}")
            A(f"buffer_store_dwordx4 {v(d, 4)}, v3, s[{S_WS}:{S_WS + 3}], s56 offen offset:{16 * cc}")
        A("s_add_u32 s56, s56, 5120")


def w1_shuffle(A, red, end):
    shuf_ids(A)
    A("v_lshrrev_b32 v1, 4, v2")
    A("v_mul_u32_u24 v1, 36864, v1")
    A("v_and_b32 v4, 15, v2")
    A("v_lshl_add_u32 v3, v4, 3, v1")
    A(f"s_mul_i32 s56, s{S_J}, 1152")
    A(f"s_lshl_b32 s57, s{S_G}, 7")
    A("s_add_u32 s56, s56, s57")
    A(f"s_mul_i32 s57, s{S_WAVE}, {32 * 9216}")
    A("s_add_u32 s56, s56, s57")
    for i in range(16):
        A(f"v_mov_b32 v{SR + 48 + i}, 0")
    for n in range(4):
        if n == 3:
            A(f"s_cmp_ge_u32 s{S_WAVE}, 3")
            A("s_cbranch_scc1 L_w1_l3")
        for e in range(8):
            A(f"s_add_u32 s57, s56, {(160 * n + 16 * (e >> 2) + (e & 3)) * 9216}")
            A(f"buffer_load_dwordx2 {v(SR + 16 * n + 2 * e, 2)}, v3, s[{S_W}:{S_W + 3}], s57 offen")
    A("L_w1_l3:")
    A("s_mov_b32 s58, 0x00003f80")
    A("s_mov_b32 s59, 0x3f800000")
    SUM = 8
    for n in range(4):
        A(f"s_waitcnt vmcnt({max(0, 16 - 8 * n)})")
        for e in range(8):
            for cc in range(4):
                c = "0" if (n == 0 and e == 0) else f"v{SUM + cc}"
                A(f"v_dot2_f32_bf16 v{SUM + cc}, v{SR + 16 * n + 2 * e + (cc >> 1)}, s{58 + (cc & 1)}, {c}")
    stamp(A, 3)
    for i in range(2):
        A(f"v_permlane32_swap_b32 v{SUM + i}, v{SUM + 2 + i}")
    for i in range(2):
        A(f"v_add_f32 v{SUM + i}, v{SUM + i}, v{SUM + 2 + i}")
    A(f"v_permlane16_swap_b32 v{SUM}, v{SUM + 1}")
    A(f"v_add_f32 v{SUM}, v{SUM}, v{SUM + 1}")
    A("v_lshlrev_b32 v5, 4, v4")
    A(f"v_add_u32 v5, {red}, v5")
    A("v_lshrrev_b32 v1, 4, v2")
    A("v_lshl_add_u32 v6, v1, 2, v5")
    A(f"s_lshl_b32 s57, s{S_WAVE}, 8")
    A("v_add_u32 v6, s57, v6")
    A(f"ds_write_b32 v6, v{SUM}")
    A("s_waitcnt lgkmcnt(0)")
    A("s_barrier")
    for w in range(5):
        A(f"ds_read_b128 {v(12 + 4 * w, 4)}, v5 offset:{256 * w}")
    A("v_lshlrev_b32 v3, 4, v2")
    A(f"s_mul_i32 s56, s{S_J}, 9")
    A(f"s_add_u32 s56, s56, s{S_G}")
    A("s_mul_i32 s56, s56, 73728")
    A(f"s_add_u32 s56, s56, {W1S}")
    A(f"s_lshl_b32 s57, s{S_WAVE}, 10")
    A("s_add_u32 s56, s56, s57")
    A("s_waitcnt lgkmcnt(0)")
    for w in range(1, 5):
        for h in range(2):
            A(f"v_pk_add_f32 {v(12 + 2 * h, 2)}, {v(12 + 2 * h, 2)}, {v(12 + 4 * w + 2 * h, 2)}")
    for cc in range(4):
        A(f"v_mul_f32 v{12 + cc}, {INV576 | 0x80000000}, v{12 + cc}")
    for n in range(4):
        if n == 3:
            A(f"s_cmp_ge_u32 s{S_WAVE}, 3")
            A(f"s_cbranch_scc1 {end}")
        for cc in range(4):
            t = 32 + 8 * (cc & 1)
            d = 48 + 4 * cc
            for e in range(8):
                A(f"v_dot2_f32_bf16 v{t + e}, v{SR + 16 * n + 2 * e + (cc >> 1)}, s{58 + (cc & 1)}, v{12 + cc}")
            A(f"s_add_u32 s57, s56, {cc * 18432 + 5120 * n}")
            for k in range(4):
                A(f"v_cvt_pk_bf16_f32 v{d + k}, v{t + 2 * k}, v{t + 2 * k + 1}")
            A(f"buffer_store_dwordx4 {v(d, 4)}, v3, s[{S_WS}:{S_WS + 3}], s57 offen")


CA = 4
CK = 36
C2 = 104
C3 = 128
CF = 144
CB = 148
CU = 164
CD = 196
CW = 220
CAD = 232
CO = 244


def conv_dma(A):
    A("v_lshrrev_b32 v1, 3, v2")
    A("v_mul_u32_u24 v1, 18432, v1")
    A("v_and_b32 v3, 7, v2")
    A("v_lshl_add_u32 v3, v3, 4, v1")
    A(f"s_mul_i32 s{S_T}, s{S_WAVE}, {8 * 18432}")
    A(f"s_lshl_b32 s{S_T + 1}, s2, 7")
    A(f"s_add_u32 s{S_T}, s{S_T}, s{S_T + 1}")
    A(f"s_lshl_b32 s{S_T + 1}, s{S_WAVE}, 10")
    A(f"s_add_u32 s{S_T + 1}, s{S_T + 1}, 4096")
    for n in range(8):
        A(f"s_add_u32 m0, s{S_T + 1}, {4096 * n}")
        A(f"s_add_u32 s{S_T + 2}, s{S_T}, {UR + n * 32 * 18432}")
        A(f"buffer_load_dwordx4 v3, s[{S_WS}:{S_WS + 3}], s{S_T + 2} offen lds")


def conv_kloads(A, vm):
    ws, so = f"s[{S_WS}:{S_WS + 3}]", f"s{S_CH + 1}"
    A(f"s_mul_i32 s{S_CH + 1}, s{S_CH}, 3072")
    A(f"s_add_u32 s{S_CH + 1}, s{S_CH + 1}, {KT}")
    lo, g16, t0, t1, t2 = CO, CO + 1, CO + 2, CO + 3, CO + 4
    A(f"v_and_b32 v{lo}, 15, v2")
    A(f"v_and_b32 v{g16}, 48, v2")
    A(f"v_lshlrev_b32 v{t0}, 3, v{lo}")
    A(f"v_sub_u32 v{t0}, v{g16}, v{t0}")
    A(f"v_add_u32 v{t0}, {R2B + 120}, v{t0}")
    for i in range(3, 9):
        A(f"buffer_load_dwordx4 {v(C2 + 4 * (i - 3), 4)}, v{t0}, {ws}, {so} offen offset:{64 * (8 - i)}")
        vm.issue(("b2", i))
    A(f"v_lshlrev_b32 v{t1}, 2, v{lo}")
    A(f"v_sub_u32 v{t1}, v{g16}, v{t1}")
    A(f"v_add_u32 v{t1}, {R3B + 60}, v{t1}")
    for i in range(4, 8):
        A(f"buffer_load_dwordx4 {v(C3 + 4 * (i - 4), 4)}, v{t1}, {ws}, {so} offen offset:{64 * (7 - i)}")
        vm.issue(("b3", i))
    A(f"buffer_load_ushort v{CO + 7}, off, {ws}, {so} offset:{R2B + 128}")
    vm.issue("a")
    A(f"v_and_b32 v{t2}, 1, v2")
    A(f"v_mul_u32_u24 v{t2}, {RD1B - RD0B}, v{t2}")
    A(f"v_lshl_add_u32 v{t2}, v{lo}, 1, v{t2}")
    A(f"v_sub_u32 v{t2}, v{g16}, v{t2}")
    A(f"v_add_u32 v{t2}, {RD1B + 30}, v{t2}")
    order = [0, 8, 16] + [q for r in range(1, 8) for q in (r, r + 8)]
    for q in order:
        A(f"buffer_load_dwordx4 {v(CK + 4 * q, 4)}, v{t2}, {ws}, {so} offen offset:{64 * (16 - q)}")
        vm.issue(("a", q))


def conv_setup(A):
    for i in range(4):
        A(f"v_mov_b32 v{CU + i}, 0")
    A("v_lshlrev_b32 v1, 4, v0")
    A(f"ds_write_b128 v1, {v(CU, 4)}")
    lo, g, dl, t = CD, CD + 1, CD + 2, CD + 4
    A(f"v_and_b32 v{lo}, 15, v2")
    A(f"v_lshrrev_b32 v{g}, 4, v2")
    A(f"v_lshlrev_b32 v{dl}, 3, v{g}")
    A(f"v_sub_u32 v{dl}, v{lo}, v{dl}")
    A(f"s_mov_b32 s{S_T + 3}, 0x8001")
    A(f"s_mov_b32 s{S_T + 4}, 0x10001")
    bands = [(6, 10, CB, 0x3f80), (11, 13, CB + 4, 0x3f80), (4, 12, CB + 8, 0x3f80), (5, 11, CB + 12, 0x3f80),
             (12, 13, CF, 0xffff)]
    for b0, b1, d, one in bands:
        A(f"v_add_u32 v{t + 2}, {b0 + 32}, v{dl}")
        A(f"v_mov_b32 v{t}, {(1 << (b1 - b0 + 1)) - 1}")
        A(f"v_mov_b32 v{t + 1}, 0")
        A(f"v_lshlrev_b64 {v(t, 2)}, v{t + 2}, {v(t, 2)}")
        for k in range(4):
            A(f"v_bfe_u32 v{d + k}, v{t + 1}, {2 * k}, 2")
        for k in range(4):
            A(f"v_mul_u32_u24 v{d + k}, s{S_T + 3}, v{d + k}")
        for k in range(4):
            A(f"v_and_b32 v{d + k}, s{S_T + 4}, v{d + k}")
        for k in range(4):
            A(f"v_mul_u32_u24 v{d + k}, {one}, v{d + k}")

    def addr(dst, row, piece_extra=0):
        A(f"v_bfe_u32 v{t}, v{row}, 1, 3")
        A(f"v_xor_b32 v{t}, s{S_WAVE}, v{t}")
        if piece_extra:
            A(f"v_xor_b32 v{t}, {piece_extra}, v{t}")
        A(f"v_lshlrev_b32 v{t}, 4, v{t}")
        A(f"v_lshl_add_u32 v{dst}, v{row}, 7, v{t}")
    row = t + 2
    for r in range(4, 8):
        A(f"v_lshl_add_u32 v{row}, v{lo}, 1, v{g}")
        A(f"v_add_u32 v{row}, {30 - 4 * r}, v{row}")
        addr(CAD + r - 4, row)
    A(f"v_add3_u32 v{row}, v{lo}, v{g}, 29")
    addr(CAD + 4, row)
    A(f"v_lshl_add_u32 v{row}, v{lo}, 1, v{g}")
    A(f"v_add_u32 v{row}, 29, v{row}")
    addr(CAD + 5, row)
    A(f"v_lshrrev_b32 v{row}, 1, v{g}")
    A(f"v_lshl_add_u32 v{row}, v{lo}, 1, v{row}")
    A(f"v_add_u32 v{row}, 32, v{row}")
    addr(CAD + 6, row, 4)
    A(f"v_and_b32 v{t}, 1, v{g}")
    A(f"v_lshl_add_u32 v{CAD + 6}, v{t}, 3, v{CAD + 6}")
    A(f"v_lshrrev_b32 v{t}, 2, v{lo}")
    A(f"v_mul_u32_u24 v{t}, 73728, v{t}")
    A(f"v_and_b32 v{t + 1}, 3, v{lo}")
    A(f"v_xor_b32 v{t + 1}, s{S_WAVE}, v{t + 1}")
    A(f"v_lshl_add_u32 v{t}, v{t + 1}, 5, v{t}")
    A(f"v_lshl_add_u32 v{CAD + 7}, v{g}, 3, v{t}")
    A(f"s_lshl_b32 s{S_T + 5}, s{S_CH}, 7")
    A(f"s_add_u32 s{S_T + 5}, s{S_T + 5}, {HT}")


def mf(d, x, y, c):
    return f"v_mfma_f32_16x16x32_bf16 {v(d, 4)}, {v(x, 4)}, {v(y, 4)}, {c if isinstance(c, str) else v(c, 4)}"


def conv_main(A, vm, store_flags=""):
    lg = Cnt("lgkmcnt", 15)
    for T in range(8):
        A(f"ds_read_b64 {v(CD + 8 + 2 * T, 2)}, v{CAD + 6} offset:{4096 * T}")
        lg.issue(("r", T))
    reads = [("x2", j, CAD + 4, 2048 * j) for j in range(12)]
    for j in range(4):
        reads += [("x3e", j, CAD + 5, 4096 * j), ("x3o", j, CAD + 0, 2048 + 4096 * j)]
    for Tp in range(8):
        for r in range(8):
            reads.append(("d", (Tp, r), CAD + (r & 3), (2048 if r < 4 else 0) + 4096 * Tp))
    slot = {(k, i): CU + 4 * (n % 8) for n, (k, i, _, _) in enumerate(reads)}
    nxt = [0]

    def issue_read():
        if nxt[0] >= len(reads):
            return []
        k, i, ad, off = reads[nxt[0]]
        nxt[0] += 1
        lg.issue((k, i))
        return [f"ds_read_b128 {v(slot[(k, i)], 4)}, v{ad} offset:{off}"]
    for _ in range(6):
        A.ext(issue_read())
    A.ext(lg.wait(("r", 7)))
    for T in range(8):
        for h in range(2):
            A(f"v_lshlrev_b32 v{CA + 4 * T + 2 * h}, 16, v{CD + 8 + 2 * T + h}")
            A(f"v_and_b32 v{CA + 4 * T + 2 * h + 1}, 0xffff0000, v{CD + 8 + 2 * T + h}")
    boxes = [("x2", j) for j in range(12)] + [("x3", j) for j in range(4)]
    NB = len(boxes)
    for n in range(NB + 2):
        m_box, m_use, cv = [], [], []
        if n < NB:
            k, j = boxes[n]
            d = CD + 8 * (n % 3)
            if k == "x2":
                A.ext(lg.wait(("x2", j)))
                m_box = [mf(d, slot[("x2", j)], CB, "0"), mf(d + 4, slot[("x2", j)], CB + 4, "0")]
                rd = issue_read()
            else:
                A.ext(lg.wait(("x3o", j)))
                m_box = [mf(d, slot[("x3e", j)], CB + 8, "0"), mf(d + 4, slot[("x3o", j)], CB + 12, "0")]
                rd = issue_read() + issue_read()
        else:
            rd = []
        if 1 <= n <= NB:
            d = CD + 8 * ((n - 1) % 3)
            cv = [f"v_cvt_pk_bf16_f32 v{CW + 4 * ((n - 1) % 3) + i}, v{d + i}, v{d + 4 + i}" for i in range(4)]
        if n >= 2:
            k, j = boxes[n - 2]
            w = CW + 4 * ((n - 2) % 3)
            for T in range(8):
                if k == "x2" and 3 <= 2 * T - j <= 8:
                    m_use += vm.wait(("b2", 2 * T - j)) + [mf(CA + 4 * T, w, C2 + 4 * (2 * T - j - 3), CA + 4 * T)]
                if k == "x3" and 4 <= T - j <= 7:
                    m_use += vm.wait(("b3", T - j)) + [mf(CA + 4 * T, w, C3 + 4 * (T - j - 4), CA + 4 * T)]
        A.ext(m_box + rd + m_use + cv)
    A.ext(vm.wait("a"))
    A(f"v_lshl_or_b32 v{CO + 7}, v{CO + 7}, 16, v{CO + 7}")
    for k in range(4):
        A(f"v_and_b32 v{CF + k}, v{CF + k}, v{CO + 7}")
    stamp(A, 4)
    pend = []
    for Tp in range(8):
        for r in range(8):
            u = slot[("d", (Tp, r))]
            A.ext(lg.wait(("d", (Tp, r))))
            A.ext(vm.wait(("a", r)))
            A(mf(CA + 4 * Tp, CK + 4 * r, u, CA + 4 * Tp))
            if Tp + 1 < 8:
                A.ext(vm.wait(("a", r + 8)))
                A(mf(CA + 4 * Tp + 4, CK + 4 * r + 32, u, CA + 4 * Tp + 4))
            if r == 0:
                if Tp + 2 < 8:
                    A.ext(vm.wait(("a", 16)))
                    A(mf(CA + 4 * Tp + 8, CK + 64, u, CA + 4 * Tp + 8))
                if Tp + 4 < 8:
                    A(mf(CA + 4 * Tp + 16, CF, u, CA + 4 * Tp + 16))
            A.ext(issue_read())
            if r == 3 and pend:
                A.ext(pend)
                pend = []
        o = CO + 2 * (Tp & 1)
        pend = [f"v_cvt_pk_bf16_f32 v{o}, v{CA + 4 * Tp}, v{CA + 4 * Tp + 1}",
                f"v_cvt_pk_bf16_f32 v{o + 1}, v{CA + 4 * Tp + 2}, v{CA + 4 * Tp + 3}",
                f"s_add_u32 s{S_T}, s{S_T + 5}, {294912 * Tp}",
                f"buffer_store_dwordx2 {v(o, 2)}, v{CAD + 7}, s[{S_WS}:{S_WS + 3}], s{S_T} offen {store_flags}"]
    A.ext(pend)


def flag_clear(A):
    for i in range(4):
        A(f"v_mov_b32 v{GZ + i}, 0")
    A("v_lshlrev_b32 v1, 4, v0")
    A("v_cmp_gt_u32 vcc, 128, v0")
    A("v_cndmask_b32 v1, v13, v1, vcc")
    A(f"s_lshl_b32 s{S_T + 2}, s2, 11")
    A(f"s_add_u32 s{S_T + 2}, s{S_T + 2}, {FL}")
    A(f"buffer_store_dwordx4 {v(GZ, 4)}, v1, s[{S_WS}:{S_WS + 3}], s{S_T + 2} offen")


def k1(A):
    kernel_head(A, "k1_kernel")
    A("s_cmp_ge_u32 s2, 256")
    A("s_cbranch_scc1 L_k1_exit")
    stamp(A, 0)
    prof_clear(A)
    A(f"s_load_dwordx16 s[{S_P}:{S_P + 15}], s[0:1], 0")
    A(f"s_load_dwordx2 s[{S_P + 16}:{S_P + 17}], s[0:1], {KA_DSK}")
    A(f"s_load_dwordx2 s[{S_P + 18}:{S_P + 19}], s[0:1], {KA_W2}")
    A(f"s_load_dwordx2 s[{S_P + 20}:{S_P + 21}], s[0:1], {KA_WS}")
    wave_id(A)
    A("s_waitcnt lgkmcnt(0)")
    stamp(A, 1)
    srd(A, S_X, S_P, X_BYTES)
    srd(A, S_D, S_P + 16, 1152)
    ln_issue(A)
    srd(A, S_WS, S_P + 20, WS_END)
    srd(A, S_W, S_P + 18, W_BYTES)
    channel_of_wave(A)
    flag_clear(A)
    A("s_cmp_ge_u32 s2, 144")
    A("s_cbranch_scc1 L_k1_i2")
    A(f"s_cmp_ge_u32 s{S_WAVE}, 4")
    A("s_cbranch_scc1 L_k1_i0")
    n = kgen_issue(A)
    A(f"s_waitcnt vmcnt({n + 1})")
    A("s_branch L_k1_ln")
    A("L_k1_i2:")
    A("s_cmp_ge_u32 s2, 216")
    A("s_cbranch_scc1 L_k1_i0")
    w2_issue(A, "L_k1_w2i")
    A("s_waitcnt vmcnt(33)")
    A("s_branch L_k1_ln")
    A("L_k1_w2i_3:")
    A("s_waitcnt vmcnt(25)")
    A("s_branch L_k1_ln")
    A("L_k1_i0:")
    A("s_waitcnt vmcnt(1)")
    A("L_k1_ln:")
    stamp(A, 2)
    ln_compute(A, K1_RED)
    stamp(A, 3)
    A("s_cmp_ge_u32 s2, 144")
    A("s_cbranch_scc1 L_k1_r2")
    A(f"s_cmp_ge_u32 s{S_WAVE}, 4")
    A("s_cbranch_scc1 L_k1_end")
    A("s_waitcnt vmcnt(4)")
    stamp(A, 4)
    kgen_compute(A)
    stamp(A, 6)
    A("s_branch L_k1_end")
    A("L_k1_r2:")
    A("s_cmp_ge_u32 s2, 216")
    A("s_cbranch_scc1 L_k1_end")
    w2_finish(A, "L_k1_end", 4)
    A("L_k1_end:")
    prof_flush(A, 0)
    A("L_k1_exit:")
    A("s_endpgm")


def k2(A):
    kernel_head(A, "k2_kernel")
    A("s_cmp_ge_u32 s2, 216")
    A("s_cbranch_scc1 L_k2_exit")
    stamp(A, 0)
    prof_clear(A)
    A(f"s_load_dwordx2 s[{S_P + 18}:{S_P + 19}], s[0:1], {KA_W1}")
    A(f"s_load_dwordx2 s[{S_P + 20}:{S_P + 21}], s[0:1], {KA_WS}")
    wave_id(A)
    A("s_waitcnt lgkmcnt(0)")
    srd(A, S_WS, S_P + 20, WS_END)
    srd(A, S_W, S_P + 18, W_BYTES)
    A("s_cmp_ge_u32 s2, 144")
    A("s_cbranch_scc1 L_k2_w1")
    A(f"s_cmp_ge_u32 s{S_WAVE}, 4")
    A("s_cbranch_scc1 L_k2_end")
    channel_of_wave(A)
    vm = Cnt("vmcnt", 63)
    conv_dma(A)
    vm.n = 7
    vm.issue("dma")
    conv_kloads(A, vm)
    stamp(A, 1)
    conv_setup(A)
    stamp(A, 2)
    A.ext(vm.wait("dma"))
    A("s_waitcnt lgkmcnt(0)")
    A("s_barrier")
    stamp(A, 3)
    conv_main(A, vm)
    stamp(A, 6)
    A("s_branch L_k2_end")
    A("L_k2_w1:")
    w1_shuffle(A, K2_RED, "L_k2_end")
    A("L_k2_end:")
    prof_flush(A, 1)
    A("L_k2_exit:")
    A("s_endpgm")
```

```python
from common import *
from front import cmul, mf

STG_ROW = 528
STG_WAVE = 56 * STG_ROW
IMG = 4 * STG_WAVE
LNB = IMG + 4096
LN_RS, LN_R = 1216, 9760
RED = 147456
K12_LDS = IMG + 36864

S_WAVE = 3
S_DBG, S_WS, S_X, S_D, S_W = 4, 8, 12, 16, 20
S_CH, S_KT = 24, 25
S_T = 26
S_P = 32
S_U = 62
S_SP, S_HO = 72, 73
CFG = dict(noshuf=0, cpf=1, g0=2, gj0=0, gstep=5, st_at=31, w2c=1)

ws = f"s[{S_WS}:{S_WS + 3}]"
GP, GZ = 84, 92
GX = 164
GS = 180
GA = 136
S_CW, S_ZF = 75, 80
S_DS = 16
dbg = f"s[{S_DBG}:{S_DBG + 3}]"
xs = f"s[{S_X}:{S_X + 3}]"
ZTARGET = 24


def gather(i):
    return f"buffer_load_dwordx2 {v(GX + 2 * i, 2)}, v{GA}, {xs}, s{S_U + 8 + i // 4} offen offset:{1152 * (i % 4)}"


STLOAD = [f"buffer_load_dwordx4 {v(GS + 4 * k, 4)}, v{GA + 1}, {ws}, 0 offen offset:{16 * k} sc1" for k in range(4)]


def zf_scalar(off):
    return f"s_load_dword s{S_ZF}, s[{S_P + 26}:{S_P + 27}], {off}"


def zf_check(A, tag, off, target, vr, sp=None):
    sp = S_SP if sp is None else sp
    A("s_waitcnt lgkmcnt(0)")
    A(f"s_cmp_lg_u32 s{S_ZF}, {target}")
    A(f"s_cbranch_scc1 L_zf{tag}")
    A(f"L_zfok{tag}:")
    SLOW.append([f"L_zf{tag}:", f"v_mov_b32 v{vr}, {off}", f"global_load_dword v{vr}, v{vr}, s[{S_P + 26}:{S_P + 27}] sc1",
                 "s_waitcnt vmcnt(0)", f"v_cmp_ne_u32 vcc, {target}, v{vr}", f"s_cbranch_vccz L_zfok{tag}",
                 f"s_cmp_eq_u32 s{sp}, 0", f"s_cbranch_scc1 L_zfok{tag}", f"s_sub_u32 s{sp}, s{sp}, 1",
                 "s_sleep 2", f"s_branch L_zf{tag}"])


def normalise(A):
    XF = 40
    for i in range(16):
        A(f"v_lshlrev_b32 v{XF + 2 * i}, 16, v{GX + i}")
        A(f"v_and_b32 v{XF + 2 * i + 1}, 0xffff0000, v{GX + i}")


def normalise2(A):
    XF, UF, PK = 40, 72, 196
    for i in range(8):
        sp = v(GS + 2 * i, 2)
        for h in range(2):
            r = 4 * i + 2 * h
            A(f"v_pk_fma_f32 {v(UF + r, 2)}, {v(XF + r, 2)}, {sp}, {sp} op_sel:[0,0,1] op_sel_hi:[1,0,1]")
    for b in range(4):
        for k in range(4):
            A(f"v_cvt_pk_bf16_f32 v{PK + 4 * b + k}, v{UF + 8 * k + b}, v{UF + 8 * k + 4 + b}")
        A(f"v_xor_b32 v1, {16 * b}, v{CO}")
        A(f"ds_write_b128 v1, {v(PK + 4 * b, 4)}")
    for i in range(8):
        for h in range(2):
            r = 4 * i + 2 * h
            A(f"v_pk_fma_f32 {v(XF + r, 2)}, {v(UF + r, 2)}, s[{S_DS + 2 * h}:{S_DS + 2 * h + 1}], {v(XF + r, 2)}")
    for b in range(4):
        for k in range(4):
            A(f"v_cvt_pk_bf16_f32 v{PK + 16 + 4 * b + k}, v{XF + 8 * k + b}, v{XF + 8 * k + 4 + b}")
        A(f"v_xor_b32 v1, {64 + 16 * b}, v{CO}")
        A(f"ds_write_b128 v1, {v(PK + 16 + 4 * b, 4)}")


SLOW = []


def spin(tag, load, target, reg):
    SLOW.append([f"L_slow{tag}:", f"s_cmp_eq_u32 s{S_SP}, 0", f"s_cbranch_scc1 L_back{tag}", f"s_sub_u32 s{S_SP}, s{S_SP}, 1",
                 "s_sleep 1"] + load + ["s_waitcnt vmcnt(0)", f"v_cmp_ne_u32 vcc, {target}, v{reg}",
                 f"s_cbranch_vccnz L_slow{tag}", f"s_branch L_back{tag}"])
    return [f"v_cmp_ne_u32 vcc, {target}, v{reg}", f"s_cbranch_vccnz L_slow{tag}", f"L_back{tag}:"]


def kgen_issue(A):
    A(f"s_lshl_b32 s{S_T + 2}, s{S_CH}, 8")
    A(f"v_lshl_add_u32 v1, v2, 2, s{S_T + 2}")
    for i in range(6):
        A(f"global_load_dword v{GP + i}, v1, s[{S_P + 2 + 2 * i}:{S_P + 3 + 2 * i}]")
    A(f"s_lshl_b32 s{S_T + 2}, s{S_CH}, 1")
    A(f"v_mov_b32 v1, s{S_T + 2}")
    A(f"global_load_ushort v{GP + 6}, v1, s[{S_P + 14}:{S_P + 15}]")


def kgen_valu(A, glate):
    U, DT, ADR = 4, 16, 17
    for i in range(6):
        A(f"v_lshlrev_b32 v{U + 2 * i}, 16, v{GP + i}")
        A(f"v_and_b32 v{U + 2 * i + 1}, 0xffff0000, v{GP + i}")
    A(f"v_lshlrev_b32 v{DT}, 16, v{GP + 6}")
    A(f"v_mul_f32 v{DT}, {LOG2E}, v{DT}")
    A(f"v_exp_f32 v{DT}, v{DT}")
    A(f"s_mul_i32 s{S_T}, s{S_WAVE}, {STG_WAVE}")
    A(f"v_lshl_add_u32 v{ADR}, v2, 3, s{S_T}")
    A(f"v_cvt_pk_bf16_f32 v{DT}, v{DT}, v{DT}")
    A(f"v_and_b32 v{DT}, 0xffff0000, v{DT}")
    for i in range(4):
        A(f"v_pk_mul_f32 {v(U + 2 * i, 2)}, {v(U + 2 * i, 2)}, {v(DT, 2)} op_sel_hi:[1,0]")
    for m in range(2):
        A(f"v_mul_f32 v{U + m}, {LOG2E}, v{U + m}")
        A(f"v_mul_f32 v{U + 2 + m}, {INV2PI}, v{U + 2 + m}")
    if glate:
        A(glate.pop(0))
    names = ["z1", "z8", "w", "z2", "z3", "z4", "z6", "t0", "t1", "p0", "p1", "y0", "y1"]
    R = {n: 48 + 4 * i if i < 8 else 100 + 4 * (i - 8) for i, n in enumerate(names)}
    TMP = 20
    for nm, lit in (("z8", "0x41000000"), ("z1", None), ("w", "0x43800000")):
        if lit:
            for m in range(2):
                A(f"v_mul_f32 v{TMP + m}, {lit}, v{U + m}")
                A(f"v_mul_f32 v{TMP + 2 + m}, {lit}, v{U + 2 + m}")
        src = TMP if lit else U
        for m in range(2):
            A(f"v_fract_f32 v{TMP + 2 + m}, v{src + 2 + m}")
        for m in range(2):
            A(f"v_exp_f32 v{TMP + m}, v{src + m}")
        for m in range(2):
            A(f"v_cos_f32 v{R[nm] + 2 * m}, v{TMP + 2 + m}")
            A(f"v_sin_f32 v{R[nm] + 2 * m + 1}, v{TMP + 2 + m}")
        A(f"v_pk_mul_f32 {v(R[nm], 2)}, {v(R[nm], 2)}, {v(TMP, 2)} op_sel_hi:[1,0]")
        A(f"v_pk_mul_f32 {v(R[nm] + 2, 2)}, {v(R[nm] + 2, 2)}, {v(TMP, 2)} op_sel:[0,1] op_sel_hi:[1,1]")
    for m in range(2):
        y = R["y0"] + 2 * m
        A(f"v_mul_f32 v{y}, v{U + 8 + m}, v{U + 4 + m}")
        A(f"v_mul_f32 v{y + 1}, v{U + 8 + m}, v{U + 6 + m}")
    for m in range(2):
        y = R["y0"] + 2 * m
        A(f"v_fma_f32 v{y}, -v{U + 10 + m}, v{U + 6 + m}, v{y}")
        A(f"v_fma_f32 v{y + 1}, v{U + 10 + m}, v{U + 4 + m}, v{y + 1}")
    offs = [[0, 1, 2, 3, 4, 5, 6, 7], [256, 256, 258, 260, 260, 260, 262, 264]]
    rows = {}
    for hi in range(2):
        for i in range(12):
            e = offs[hi][i] if i < 8 else (520, 516, 1032, 1544)[i - 8] + 256 * hi
            rows.setdefault(e, []).append(8 * (i >> 2) + 4 * hi + (i & 3))
    PK = [84, 86, 88, 90]
    pk = [0]

    def emit(reg, rws, neg):
        d = PK[pk[0] % 4]
        pk[0] += 1
        n = "-" if neg else ""
        out = [f"v_cvt_pk_bf16_f32 v{d + m}, v{reg + 2 * m}, {n}v{reg + 2 * m + 1}" for m in range(2)]
        out += [f"ds_write_b64 v{ADR}, {v(d, 2)} offset:{r * STG_ROW}" for r in rws]
        return out

    def both(d, x, y):
        c0, c1 = cmul(R[d], R[x], R[y]), cmul(R[d] + 2, R[x] + 2, R[y] + 2)
        return [c0[0], c1[0], c0[1], c1[1]]
    A("v_mov_b32 v24, 0x3f80")
    A("v_mov_b32 v25, 0x3f80")
    A.ext([f"ds_write_b64 v{ADR}, v[24:25] offset:{r * STG_ROW}" for r in rows[0]])
    A.ext(emit(R["z1"], rows[1], 0) + emit(R["w"], rows[256], 0))
    chain = [("z2", "z1", "z1", 2), ("p0", "w", "z8", 264), ("z3", "z2", "z1", 3), ("z4", "z2", "z2", 4),
             ("p1", "p0", "w", 520), ("t0", "w", "z2", 258), ("t1", "z4", "z1", 5), ("p0", "p1", "w", 776),
             ("z6", "z4", "z2", 6), ("t0", "z4", "z3", 7), ("p1", "p0", "w", 1032), ("t1", "w", "z4", 260),
             ("t0", "w", "z6", 262), ("p0", "p1", "w", 1288), ("z3", "t1", "w", 516), ("p1", "p0", "w", 1544),
             ("t0", "z3", "w", 772), ("p0", "p1", "w", 1800)]
    xi = iter(chain)
    cur, nxt = "y0", "y1"
    for j in range(32):
        if glate and j >= CFG["gj0"] and (j - CFG["gj0"]) % CFG["gstep"] == 0:
            A(glate.pop(0))
        if j == CFG["st_at"]:
            A.ext(glate)
            del glate[:]
            if CFG["w2c"] and not CFG["noshuf"]:
                shuf_dma(A, 0)
            A(zf_scalar(0))
        ops = both(nxt, cur, "z8") if j < 31 else []
        ey = emit(R[cur], [24 + j], 1)
        A.ext(ops[:2] + ey[:2] + ops[2:] + ey[2:])
        c = next(xi, None)
        if c:
            A.ext(both(c[0], c[1], c[2]))
            A.ext(emit(R[c[0]], rows[c[3]], 0))
        cur, nxt = nxt, cur


def kgen_contract(A):
    ACC = 4
    A("v_and_b32 v1, 31, v2")
    A(f"v_mul_u32_u24 v1, {STG_ROW}, v1")
    A("v_lshrrev_b32 v3, 5, v2")
    A("v_lshl_add_u32 v1, v3, 4, v1")
    A(f"v_add_u32 v1, s{S_T}, v1")
    lg = Cnt("lgkmcnt", 15)
    zf_check(A, "c", 0, 1, 3)
    A.ext(STLOAD)

    def rd(k):
        lg.issue()
        lg.issue(("f", k))
        return [f"ds_read_b128 {a(4 * k, 4)}, v1 offset:{32 * k}",
                f"ds_read_b128 {a(64 + 4 * k, 4)}, v1 offset:{32 * k + 24 * STG_ROW}"]
    AHEAD = 6
    for k in range(AHEAD):
        A.ext(rd(k))
    for k in range(16):
        A.ext(lg.wait(("f", k)))
        A(f"v_mfma_f32_32x32x16_bf16 {v(ACC, 16)}, {a(4 * k, 4)}, {a(64 + 4 * k, 4)}, {'0' if k == 0 else v(ACC, 16)}")
        if k + AHEAD < 16:
            A.ext(rd(k + AHEAD))
    D0, D2, D1, D3, Z = 24, 28, 32, 36, GZ
    for k in range(4):
        A(f"v_cvt_pk_bf16_f32 v{D0 + k}, v{ACC + 2 * k}, v{ACC + 2 * k + 1}")
    A(f"v_cvt_pk_bf16_f32 v20, v{ACC + 8}, v{ACC + 9}")
    A(f"v_cvt_pk_bf16_f32 v21, v{ACC + 10}, v{ACC + 11}")
    A(f"ds_write_b128 v{TA}, {v(D0, 4)} offset:32")
    A(f"v_mov_b32_dpp v{D2}, v{D0 + 3} wave_shr:1 row_mask:0xf bank_mask:0xf bound_ctrl:1")
    A(f"v_mov_b32_dpp v22, v{D0 + 2} wave_shr:1 row_mask:0xf bank_mask:0xf bound_ctrl:1")
    for k in range(3):
        A(f"v_mov_b32 v{D2 + 1 + k}, v{D0 + k}")
    A(f"v_readlane_b32 s{S_T + 1}, v{D0 + 2}, 63")
    A(f"v_readlane_b32 s{S_T + 2}, v{D0 + 3}, 63")
    A(f"v_readlane_b32 s{S_T + 5}, v20, 63")
    A(f"ds_write_b128 v{TA}, {v(D2, 4)} offset:{32 + 2 * TSTR}")
    for k in range(4):
        A(f"v_alignbit_b32 v{D1 + k}, v{D0 + k}, v{D2 + k}, 16")
    A(f"ds_write_b128 v{TA}, {v(D1, 4)} offset:{32 + TSTR}")
    A(f"v_alignbit_b32 v{D3}, v{D2}, v22, 16")
    for k in range(3):
        A(f"v_mov_b32 v{D3 + 1 + k}, v{D1 + k}")
    A(f"ds_write_b128 v{TA}, {v(D3, 4)} offset:{32 + 3 * TSTR}")
    A(f"s_lshr_b32 s{S_T + 1}, s{S_T + 1}, 16")
    A(f"s_pack_ll_b32_b16 s{S_T + 1}, s{S_T + 1}, s{S_T + 2}")
    A(f"s_pack_hh_b32_b16 s{S_T + 3}, s{S_T + 2}, s{S_T + 2}")
    A(f"s_lshr_b32 s{S_T + 4}, s{S_T + 2}, 16")
    A(f"s_pack_ll_b32_b16 s{S_T + 5}, s{S_T + 5}, s{S_T + 5}")
    AA, BB, KK, K0 = S_T + 1, S_T + 2, S_T + 3, S_T + 4
    for r, row in enumerate(((KK, K0), (KK, KK), (BB, KK, K0), (AA, KK, KK))):
        for k, sr in enumerate(row):
            A(f"v_writelane_b32 v{Z + k}, s{sr}, {8 * r + 2}")
    A(f"ds_write_b32 v{TA + 1}, v20")
    A(f"ds_write_b16 v{TA + 2}, v21 offset:128")
    A(f"ds_write_b16_d16_hi v{TA + 2}, v21")
    A(f"ds_write_b128 v{TA + 3}, {v(Z, 4)}")
    for k in range(4):
        A(f"v_and_b32 v{CF + k}, s{S_T + 5}, v{CF + k}")
    for i in (4, 6, 8, 3, 5, 7):
        A(f"ds_read2_b64 {a(A2 + 4 * (i - 3), 4)}, v{TA + 4} offset0:{8 * (8 - i)} offset1:{8 * (8 - i) + 1}")
    for i in range(4, 8):
        for h in range(2):
            o = 16 * (7 - i) + 2 * h
            A(f"ds_read2_b32 {a(A3 + 4 * (i - 4) + 2 * h, 2)}, v{TA + 5} offset0:{o} offset1:{o + 1}")
    for q in range(17):
        for h in range(2):
            A(f"ds_read_b64_tr_b16 {a(AK + 4 * q + 2 * h, 2)}, v{TA + 6} offset:{64 * q + 8 * (1 - h)}")


CA = 4
AK, A2, A3, AW = 128, 196, 220, 236
TA = 128
TSTR, TB2 = 1216, 4864
CF = 144
CB = 148
CU = 164
CD = 196
CW = 220
CAD = 232
CO = 244


def conv_setup(A, glate):
    A("v_lshlrev_b32 v1, 4, v0")
    A(f"v_add_u32 v1, {IMG}, v1")
    A(f"ds_write_b128 v1, {v(GZ, 4)}")
    lo, g, dl, t = CD, CD + 1, CD + 2, CD + 4
    A(f"v_and_b32 v{lo}, 15, v2")
    A(f"v_lshrrev_b32 v{g}, 4, v2")
    A(f"v_lshlrev_b32 v{dl}, 3, v{g}")
    A(f"v_sub_u32 v{dl}, v{lo}, v{dl}")
    A(f"s_mov_b32 s{S_T + 3}, 0x8001")
    A(f"s_mov_b32 s{S_T + 4}, 0x10001")
    bands = [(6, 10, CB, 0x3f80), (11, 13, CB + 4, 0x3f80), (4, 12, CB + 8, 0x3f80), (5, 11, CB + 12, 0x3f80),
             (12, 13, CF, 0xffff)]
    for b0, b1, d, one in bands:
        A(f"v_add_u32 v{t + 2}, {b0 + 32}, v{dl}")
        A(f"v_mov_b32 v{t}, {(1 << (b1 - b0 + 1)) - 1}")
        A(f"v_mov_b32 v{t + 1}, 0")
        A(f"v_lshlrev_b64 {v(t, 2)}, v{t + 2}, {v(t, 2)}")
        for k in range(4):
            A(f"v_bfe_u32 v{d + k}, v{t + 1}, {2 * k}, 2")
        for k in range(4):
            A(f"v_mul_u32_u24 v{d + k}, s{S_T + 3}, v{d + k}")
        for k in range(4):
            A(f"v_and_b32 v{d + k}, s{S_T + 4}, v{d + k}")
        for k in range(4):
            A(f"v_mul_u32_u24 v{d + k}, {one}, v{d + k}")
    if glate:
        A(glate.pop(0))
    A(f"s_mov_b32 s{S_T + 3}, {IMG}")

    def addr(dst, row, piece_extra=0):
        A(f"v_bfe_u32 v{t}, v{row}, 1, 3")
        A(f"v_xor_b32 v{t}, s{S_WAVE}, v{t}")
        if piece_extra:
            A(f"v_xor_b32 v{t}, {piece_extra}, v{t}")
        A(f"v_lshl_add_u32 v{t}, v{t}, 4, s{S_T + 3}")
        A(f"v_lshl_add_u32 v{dst}, v{row}, 7, v{t}")
    row, r2 = t + 2, t + 3
    A(f"v_lshl_add_u32 v{r2}, v{lo}, 1, v{g}")
    for r in range(4, 8):
        A(f"v_add_u32 v{row}, {30 - 4 * r}, v{r2}")
        addr(CAD + r - 4, row)
    A(f"v_add3_u32 v{row}, v{lo}, v{g}, 29")
    addr(CAD + 4, row)
    A(f"v_add_u32 v{row}, 29, v{r2}")
    addr(CAD + 5, row)
    A(f"v_lshrrev_b32 v{r2}, 1, v{g}")
    A(f"v_lshl_add_u32 v{row}, v{lo}, 1, v{r2}")
    A(f"v_add_u32 v{row}, 32, v{row}")
    addr(CAD + 6, row, 4)
    A(f"v_and_b32 v{row}, 1, v{g}")
    A(f"v_lshl_add_u32 v{CAD + 6}, v{row}, 3, v{CAD + 6}")
    A(f"v_lshrrev_b32 v{t}, 2, v{lo}")
    A(f"v_lshl_add_u32 v{t}, v{row}, 2, v{t}")
    A(f"v_mul_u32_u24 v{t}, 73728, v{t}")
    A(f"s_bfe_u32 s{S_T + 4}, s{S_CH}, 0x20001")
    A(f"v_and_b32 v{t + 1}, 3, v{lo}")
    A(f"v_xor_b32 v{t + 1}, s{S_T + 4}, v{t + 1}")
    A(f"v_lshl_add_u32 v{t}, v{t + 1}, 5, v{t}")
    A(f"v_lshl_add_u32 v{CAD + 7}, v{r2}, 4, v{t}")
    A(f"s_lshl_b32 s{S_HO}, s{S_CH}, 7")
    A(f"s_add_u32 s{S_HO}, s{S_HO}, {HT}")
    A(f"s_mul_i32 s{S_T + 3}, s{S_WAVE}, {STG_WAVE}")
    A(f"v_lshl_add_u32 v{TA}, v2, 4, s{S_T + 3}")
    A(f"s_add_u32 s{S_T + 4}, s{S_T + 3}, {TB2 + R2B + 380}")
    A(f"v_lshlrev_b32 v{t}, 2, v2")
    A(f"v_sub_u32 v{TA + 1}, s{S_T + 4}, v{t}")
    A(f"s_add_u32 s{S_T + 4}, s{S_T + 3}, {TB2 + R3B + 126}")
    A(f"v_lshlrev_b32 v{t}, 1, v2")
    A(f"v_sub_u32 v{TA + 2}, s{S_T + 4}, v{t}")
    A(f"v_and_b32 v{t}, 7, v2")
    A(f"v_lshrrev_b32 v{t + 1}, 1, v{t}")
    A(f"v_min_u32 v{t + 1}, 1, v{t + 1}")
    A(f"v_lshlrev_b32 v{t + 1}, 10, v{t + 1}")
    A(f"v_bfe_u32 v{row}, v2, 3, 2")
    A(f"v_mul_u32_u24 v{r2}, {TSTR}, v{row}")
    A(f"v_add_u32 v{t + 1}, v{t + 1}, v{r2}")
    A(f"v_and_b32 v{row}, 1, v{row}")
    A(f"v_mul_u32_u24 v{row}, 384, v{row}")
    A(f"v_add_u32 v{row}, {TB2 + 256}, v{row}")
    A("v_cmp_gt_u32 vcc, 32, v2")
    A(f"v_cndmask_b32 v{t + 1}, v{row}, v{t + 1}, vcc")
    A(f"v_lshl_add_u32 v{t}, v{t}, 4, s{S_T + 3}")
    A(f"v_add_u32 v{TA + 3}, v{t}, v{t + 1}")
    A(f"v_and_b32 v{g}, 48, v2")
    A(f"v_add_u32 v{r2}, s{S_T + 3}, v{g}")
    A(f"v_lshlrev_b32 v{t}, 3, v{lo}")
    A(f"v_sub_u32 v{t}, v{r2}, v{t}")
    A(f"v_add_u32 v{TA + 4}, {TB2 + R2B + 120}, v{t}")
    A(f"v_lshlrev_b32 v{t}, 2, v{lo}")
    A(f"v_sub_u32 v{t}, v{r2}, v{t}")
    A(f"v_add_u32 v{TA + 5}, {TB2 + R3B + 60}, v{t}")
    A(f"v_bfe_u32 v{t}, v2, 2, 2")
    A(f"v_mul_u32_u24 v{t}, {TSTR}, v{t}")
    A(f"v_and_b32 v{t + 1}, 3, v2")
    A(f"v_lshl_add_u32 v{t}, v{t + 1}, 3, v{t}")
    A(f"v_sub_u32 v{t}, v{t}, v{g}")
    A(f"v_add3_u32 v{TA + 6}, v{t}, s{S_T + 3}, 56")
    A(f"v_lshlrev_b32 v{CAD + 11}, 4, v2")
    A(f"v_bfe_u32 v{t}, v0, 1, 3")
    A(f"v_lshlrev_b32 v{t}, 4, v{t}")
    A(f"v_lshl_add_u32 v{t}, v0, 7, v{t}")
    A(f"v_add_u32 v{CO}, {IMG + 4096}, v{t}")
    A("s_waitcnt lgkmcnt(0)")
    A(f"s_lshl_b32 s{S_DS}, s82, 16")
    A(f"s_and_b32 s{S_DS + 1}, s82, 0xffff0000")
    A(f"s_lshl_b32 s{S_DS + 2}, s83, 16")
    A(f"s_and_b32 s{S_DS + 3}, s83, 0xffff0000")


def mfx(d, x, y, c):
    return f"v_mfma_f32_16x16x32_bf16 {v(d, 4)}, {x}, {y}, {c if isinstance(c, str) else v(c, 4)}"


def conv_main(A):
    lg = Cnt("lgkmcnt", 15)
    reads = [("x2", j, CAD + 4, 2048 * j) for j in range(12)]
    for j in range(4):
        reads += [("x3e", j, CAD + 5, 4096 * j), ("x3o", j, CAD + 0, 2048 + 4096 * j)]
    for Tp in range(8):
        for r in range(8):
            reads.append(("d", (Tp, r), CAD + (r & 3), (2048 if r < 4 else 0) + 4096 * Tp))
    slot = {(k, i): CU + 4 * (n % 8) for n, (k, i, _, _) in enumerate(reads)}
    nxt = [0]
    started = set()

    def put(it):
        if it == "rd":
            if nxt[0] < len(reads):
                k, i, ad, off = reads[nxt[0]]
                nxt[0] += 1
                lg.issue((k, i))
                A(f"ds_read_b128 {v(slot[(k, i)], 4)}, v{ad} offset:{off}")
        elif isinstance(it, tuple):
            if it[0] == "lg":
                lg.issue(it[1])
                A(it[2])
            else:
                A.ext(lg.wait(it[1]))
        else:
            A(it)

    def acc(T, x, y):
        c = CA + 4 * T if T in started else "0"
        started.add(T)
        return mfx(CA + 4 * T, x, y, c)

    def weave(ms, fill):
        fill = list(fill)
        for i, (w, m) in enumerate(ms):
            for x in w:
                put(x)
            A(m)
            n = len(fill) if i == len(ms) - 1 else 2 - min(1, len(ms[i + 1][0]))
            for x in fill[:n]:
                put(x)
            fill = fill[n:]
    for _ in range(6):
        put("rd")
    boxes = [("x2", j) for j in range(12)] + [("x3", j) for j in range(4)]
    NB = len(boxes)
    for n in range(NB + 2):
        ms, f1, cv = [], [], []
        if n >= 2:
            k, j = boxes[n - 2]
            w = CW + 4 * ((n - 2) % 3)
            for T in range(8):
                if k == "x2" and 3 <= 2 * T - j <= 8:
                    ms.append(([], acc(T, v(w, 4), a(A2 + 4 * (2 * T - j - 3), 4))))
                if k == "x3" and 4 <= T - j <= 7:
                    ms.append(([], acc(T, v(w, 4), a(A3 + 4 * (T - j - 4), 4))))
        if n < NB:
            k, j = boxes[n]
            d = CD + 8 * (n % 3)
            if k == "x2":
                ms = [([("lgw", ("x2", j))], mf(d, slot[("x2", j)], CB, "0")), ([], mf(d + 4, slot[("x2", j)], CB + 4, "0"))] + ms
                f1 = ["rd"]
            else:
                ms = [([("lgw", ("x3o", j))], mf(d, slot[("x3e", j)], CB + 8, "0")), ([], mf(d + 4, slot[("x3o", j)], CB + 12, "0"))] + ms
                f1 = ["rd", "rd"]
        if 1 <= n <= NB:
            d = CD + 8 * ((n - 1) % 3)
            cv = [f"v_cvt_pk_bf16_f32 v{CW + 4 * ((n - 1) % 3) + i}, v{d + i}, v{d + 4 + i}" for i in range(4)]
        weave(ms, f1 + cv)
    stamp(A, 5)

    def epi(T):
        o, rr, tm = CO + 2 * (T & 1), CO + 4, CD
        out = [("lgw", ("r", T))]
        for h in range(2):
            out += [f"v_lshlrev_b32 v{tm + 2 * h}, 16, v{rr + h}", f"v_and_b32 v{tm + 2 * h + 1}, 0xffff0000, v{rr + h}"]
        out += [f"v_add_f32 v{tm + i}, v{tm + i}, v{CA + 4 * T + i}" for i in range(4)]
        out += [f"v_cvt_pk_bf16_f32 v{o + h}, v{tm + 2 * h}, v{tm + 2 * h + 1}" for h in range(2)]
        if T & 1:
            out += [f"s_add_u32 s{S_T}, s{S_HO}, {294912 * (T - 1)}", f"v_permlane16_swap_b32 v{CO}, v{CO + 2}",
                    f"v_permlane16_swap_b32 v{CO + 1}, v{CO + 3}",
                    f"buffer_store_dwordx4 {v(CO, 4)}, v{CAD + 7}, {ws}, s{S_T} offen sc1"]
        return out
    pend = []
    for Tp in range(8):
        for r in range(8):
            u = v(slot[("d", (Tp, r))], 4)
            ms = [([("lgw", ("d", (Tp, r)))], acc(Tp, a(AK + 4 * r, 4), u))]
            if Tp + 1 < 8:
                ms.append(([], acc(Tp + 1, a(AK + 4 * r + 32, 4), u)))
            if r == 0:
                if Tp + 2 < 8:
                    ms.append(([], acc(Tp + 2, a(AK + 64, 4), u)))
                if Tp + 4 < 8:
                    ms.append(([], acc(Tp + 4, v(CF, 4), u)))
            if r & 1:
                ms = [(ms[0][0], m) if i == 0 else ([], m) for i, m in enumerate([x[1] for x in ms][::-1])]
            take = 2 if r >= 1 else 0
            fl, pend = pend[:take + (1 if pend and isinstance(pend[0], tuple) else 0)] if take else [], pend[take + (1 if pend and isinstance(pend[0], tuple) else 0):] if take else pend
            extra = conv_w2_store(Tp) if (r == 0 and Tp < 4 and CFG['w2c'] and not CFG['noshuf']) else []
            if r == 7:
                fl, pend = fl + pend, []
                extra = [("lg", ("r", Tp), f"ds_read_b64 {v(CO + 4, 2)}, v{CAD + 6} offset:{4096 * Tp}")]
            weave(ms, fl + extra + ["rd"])
        pend = epi(Tp)
    for x in pend:
        put(x)


SH = 120
SV = 124
SF = 128


def shuf_addr(A, lds_base):
    A("v_lshrrev_b32 v1, 3, v2")
    A(f"v_mul_u32_u24 v{SV}, s{S_U + 1}, v1")
    A("v_lshrrev_b32 v1, 4, v2")
    A("v_lshlrev_b32 v1, 1, v1")
    A("v_xor_b32 v1, v1, v2")
    A("v_and_b32 v1, 7, v1")
    A(f"v_lshl_add_u32 v{SV}, v1, 4, v{SV}")
    A("v_lshrrev_b32 v1, 2, v2")
    A(f"v_lshl_add_u32 v{SH}, v1, 7, s{lds_base}")
    A("v_bfe_u32 v1, v2, 3, 2")
    A(f"v_lshl_add_u32 v{SH}, v1, 5, v{SH}")
    A("v_and_b32 v1, 3, v2")
    A(f"v_lshl_add_u32 v{SH}, v1, 3, v{SH}")
    for m in range(1, 4):
        A(f"v_xor_b32 v{SH + m}, {32 * m}, v{SH}")
    A(f"v_lshlrev_b32 v{SV + 1}, 4, v2")


def shuf_dma(A, lds_off):
    for q in range(4):
        A(f"s_add_u32 m0, s{S_U + 4}, {lds_off + 1024 * q}")
        if q:
            A(f"s_add_u32 s{S_U + 2}, s{S_U + 2}, s{S_U + 6}")
        A(f"buffer_load_dwordx4 v{SV}, s[{S_W}:{S_W + 3}], s{S_U + 2} offen lds")
    A(f"s_add_u32 s{S_U + 2}, s{S_U + 2}, s{S_U + 7}")


def shuf_read(A, dst, off, reg=v):
    for c in range(4):
        for h in range(2):
            A(f"ds_read_b64_tr_b16 {reg(dst + 4 * c + 2 * h, 2)}, v{SH + c} offset:{off + 2048 * h}")


def w2_unit(A, unit, ks):
    A(f"s_mul_hi_u32 s{S_U + 2}, s{unit}, 0x1c71c71d")
    A(f"s_mul_i32 s{S_U + 2}, s{S_U + 2}, {576 * 1152 - 9 * 128}")
    A(f"s_lshl_b32 s{S_U + 3}, s{unit}, 7")
    A(f"s_add_u32 s{S_U + 2}, s{S_U + 2}, s{S_U + 3}")
    A(f"s_mul_i32 s{S_U + 3}, s{ks}, {32 * 1152}")
    A(f"s_add_u32 s{S_U + 2}, s{S_U + 2}, s{S_U + 3}")
    A(f"s_mul_i32 s{S_U + 3}, s{unit}, 73728")
    A(f"s_lshl_b32 s{S_U + 5}, s{ks}, 10")
    A(f"s_add_u32 s{S_U + 3}, s{S_U + 3}, s{S_U + 5}")
    A(f"s_add_u32 s{S_U + 3}, s{S_U + 3}, {W2S}")
    A(f"s_mov_b32 s{S_U + 1}, 1152")
    A(f"s_mov_b32 s{S_U + 6}, {8 * 1152}")
    A(f"s_mov_b32 s{S_U + 7}, {104 * 1152}")


def conv_w2_issue(A):
    srd(A, S_W, S_P + 22, W_BYTES)
    A(f"s_mul_hi_u32 s{S_T + 2}, s{S_CH}, 0xe38e38f")
    A(f"s_mul_i32 s{S_T + 3}, s{S_T + 2}, 18")
    A(f"s_sub_u32 s{S_T + 3}, s{S_CH}, s{S_T + 3}")
    A(f"s_add_u32 s{S_T + 2}, s{S_T + 2}, 40")
    w2_unit(A, S_T + 2, S_T + 3)
    A(f"s_lshl_b32 s{S_U + 4}, s{S_WAVE}, 13")
    A(f"s_add_u32 s{S_U + 4}, s{S_U + 4}, {IMG + 4096}")
    shuf_addr(A, S_U + 4)


def conv_w2_store(c):
    return [f"buffer_store_dwordx4 {a(AW + 4 * c, 4)}, v{CAD + 11}, {ws}, s{S_U + 3} offen sc1",
            f"s_add_u32 s{S_U + 3}, s{S_U + 3}, 18432"]


def aux_issue(A):
    A("s_cmp_ge_u32 s2, 216")
    A(f"s_cselect_b32 s{S_T + 2}, s{S_P + 22}, s{S_P + 20}")
    A(f"s_cselect_b32 s{S_T + 3}, s{S_P + 23}, s{S_P + 21}")
    srd(A, S_W, S_T + 2, W_BYTES)
    A(f"s_sub_u32 s{S_U}, s2, 216")
    w2_unit(A, S_U, S_WAVE)
    A("s_cmp_ge_u32 s2, 216")
    A("s_cbranch_scc1 L_aux_i")
    A(f"s_sub_u32 s{S_U}, s2, 144")
    A(f"s_lshl_b32 s{S_U + 2}, s{S_U}, 7")
    A(f"s_mul_i32 s{S_U + 3}, s{S_WAVE}, {32 * 9216}")
    A(f"s_add_u32 s{S_U + 2}, s{S_U + 2}, s{S_U + 3}")
    A(f"s_mul_i32 s{S_U + 3}, s{S_U}, 73728")
    A(f"s_add_u32 s{S_U + 3}, s{S_U + 3}, s{S_U + 5}")
    A(f"s_add_u32 s{S_U + 3}, s{S_U + 3}, {W1S}")
    A(f"s_mov_b32 s{S_U + 1}, 9216")
    A(f"s_mov_b32 s{S_U + 6}, {8 * 9216}")
    A(f"s_mov_b32 s{S_U + 7}, {104 * 9216}")
    A("L_aux_i:")
    A(f"s_lshl_b32 s{S_U + 4}, s{S_WAVE}, 12")
    shuf_addr(A, S_U + 4)


def aux_stats(A):
    A("s_cmp_lg_u32 s2, 176")
    A("s_cbranch_scc1 L_aux_0")
    A("v_lshlrev_b32 v1, 4, v0")
    for i in range(4):
        A(f"s_mov_b32 s{S_T}, {ST + 4096 * i}")
        A(f"buffer_store_dwordx4 {v(GZ, 4)}, v1, {ws}, s{S_T} offen sc1")
    A("v_mov_b32 v1, 1")
    A("s_waitcnt vmcnt(0)")
    A("s_barrier")
    A(f"s_cmp_lg_u32 s{S_WAVE}, 3")
    A("s_cbranch_scc1 L_aux_0")
    A("s_mov_b64 exec, 1")
    A(f"buffer_store_dword v1, off, {dbg}, 0 sc1")
    A("s_mov_b64 exec, -1")
    A("L_aux_0:")
    A(f"s_sub_u32 s{S_T}, s2, 144")
    A(f"s_cmp_lt_u32 s{S_T}, 48")
    A("s_cbranch_scc1 L_aux_p")
    A(f"s_sub_u32 s{S_T + 1}, s{S_T}, 48")
    A(f"s_lshl_b32 s{S_T + 1}, s{S_T + 1}, 2")
    A(f"s_add_u32 s{S_T + 1}, s{S_T + 1}, s{S_WAVE}")
    A("v_lshrrev_b32 v1, 3, v2")
    A("v_mul_u32_u24 v3, 1152, v1")
    A("v_and_b32 v4, 7, v2")
    A("v_lshl_add_u32 v3, v4, 4, v3")
    A(f"s_mul_i32 s{S_T + 2}, s{S_T + 1}, 9216")
    for i in range(9):
        A(f"buffer_load_dwordx4 {v(8 + 4 * i, 4)}, v3, {xs}, s{S_T + 2} offen offset:{128 * i}")
    A("v_min_u32 v4, 1, v4")
    A("v_lshlrev_b32 v4, 31, v4")
    A("v_lshl_add_u32 v4, v1, 3, v4")
    A(f"s_lshl_b32 s{S_T + 1}, s{S_T + 1}, 6")
    A(f"s_add_u32 s{S_T + 1}, s{S_T + 1}, {ST}")
    A(f"s_mov_b32 s{S_T + 2}, {ONES}")
    for i in range(9):
        A(f"s_waitcnt vmcnt({8 - i})")
        for k in range(4):
            first = i == 0 and k == 0
            A(f"v_dot2_f32_bf16 v7, v{8 + 4 * i + k}, s{S_T + 2}, {'0' if first else 'v7'}")
            A(f"v_dot2_f32_bf16 v6, v{8 + 4 * i + k}, v{8 + 4 * i + k}, {'0' if first else 'v6'}")
    A(f"s_mov_b32 s{S_ZF}, 0")
    for ctl in ("quad_perm:[1,0,3,2]", "quad_perm:[2,3,0,1]", "row_half_mirror"):
        for r in (7, 6):
            A(f"v_add_f32_dpp v{r}, v{r}, v{r} {ctl} row_mask:0xf bank_mask:0xf")
    A(f"v_mul_f32 v7, {INV576}, v7")
    A(f"v_mul_f32 v6, {INV576}, v6")
    A("v_fma_f32 v6, -v7, v7, v6")
    A("v_max_f32 v6, 0, v6")
    A(f"v_add_f32 v6, {EPS}, v6")
    A("v_rsq_f32 v6, v6")
    A("v_or_b32 v6, 1, v6")
    A("v_mul_f32 v7, -v7, v6")
    stamp(A, 1)
    zf_check(A, "s", 0, 1, 3)
    A(f"buffer_store_dwordx2 v[6:7], v4, {ws}, s{S_T + 1} offen sc1")
    stamp(A, 2)
    A("s_branch L_aux_s")
    A("L_aux_p:")
    A(f"s_lshr_b32 s{S_T + 4}, s{S_T}, 3")
    A(f"s_lshl_b32 s{S_T + 4}, s{S_T + 4}, 2")
    A(f"s_add_u32 s{S_T + 4}, s{S_T + 4}, s{S_WAVE}")
    A(f"s_and_b32 s{S_T + 2}, s2, 7")
    A(f"s_cmp_ge_u32 s{S_T + 4}, 16")
    A("s_cbranch_scc1 L_aux_q")
    A(f"s_mul_i32 s{S_T + 1}, s{S_T + 4}, {128 * 1152}")
    A(f"s_mul_i32 s{S_T + 2}, s{S_T + 2}, 144")
    A(f"s_add_u32 s{S_T + 1}, s{S_T + 1}, s{S_T + 2}")
    A("v_mul_u32_u24 v1, 2304, v2")
    for i, o in enumerate((0, 140, 1152, 1292)):
        A(f"buffer_load_dword v{8 + i}, v1, {xs}, s{S_T + 1} offen offset:{o}")
    A("s_branch L_aux_s")
    A("L_aux_q:")
    A(f"s_cmp_ge_u32 s{S_T + 4}, 21")
    A("s_cbranch_scc1 L_aux_z")
    if CFG["cpf"]:
        code_prefetch(A)
    A("s_branch L_aux_s")
    A("L_aux_z:")
    A(f"s_mul_i32 s{S_T + 2}, s{S_T + 2}, 3")
    A(f"s_add_u32 s{S_T + 1}, s{S_T + 2}, s{S_T + 4}")
    A(f"s_lshl_b32 s{S_T + 1}, s{S_T + 1}, 11")
    A(f"s_add_u32 s{S_T + 1}, s{S_T + 1}, {CNT - 21 * 2048}")
    A("v_lshlrev_b32 v1, 4, v2")
    A(f"buffer_store_dwordx4 {v(GZ, 4)}, v1, {ws}, s{S_T + 1} offen sc1")
    A(f"buffer_store_dwordx4 {v(GZ, 4)}, v1, {ws}, s{S_T + 1} offen offset:1024 sc1")
    A("v_mov_b32 v1, 1")
    A("s_waitcnt vmcnt(0)")
    A("s_mov_b64 exec, 1")
    A(f"buffer_atomic_add v1, off, {dbg}, 0 offset:128 sc1")
    A("s_mov_b64 exec, -1")
    A("L_aux_s:")


def aux_path(A):
    pre = 0
    aux_stats(A)
    if CFG["noshuf"]:
        A("s_waitcnt vmcnt(0)")
        A("s_branch L_front_end")
    aux_issue(A)
    for n in range(4):
        shuf_dma(A, 16384 * n)
    A(f"s_cmp_ge_u32 s{S_WAVE}, 2")
    A("s_cbranch_scc1 L_aux_a")
    shuf_dma(A, 65536)
    A("L_aux_a:")
    for i in range(16):
        A(f"v_mov_b32 v{SF + 64 + i}, 0")
    for i in range(4):
        A(f"v_mov_b32 v{4 + i}, {ONES}")
    for n in range(4):
        if n >= pre:
            A(f"s_waitcnt vmcnt({4 * (3 - n)})")
        shuf_read(A, SF + 16 * n, 16384 * n)
        A("s_waitcnt lgkmcnt(0)")
    A(f"s_cmp_ge_u32 s{S_WAVE}, 2")
    A("s_cbranch_scc1 L_aux_b")
    for c in range(4):
        A(f"v_add_u32 v{SH + c}, 65536, v{SH + c}")
    shuf_read(A, SF + 64, 0)
    A("s_waitcnt lgkmcnt(0)")
    A("L_aux_b:")
    stamp(A, 3)
    A("s_cmp_ge_u32 s2, 216")
    A("s_cbranch_scc1 L_aux_w2")
    for n in range(5):
        for c in range(4):
            A(mf(8 + 4 * c, 4, SF + 16 * n + 4 * c, "0" if n == 0 else 8 + 4 * c))
    A("v_and_b32 v1, 15, v2")
    A("v_lshlrev_b32 v1, 4, v1")
    A(f"v_add_u32 v1, {RED}, v1")
    A(f"s_lshl_b32 s{S_U + 5}, s{S_WAVE}, 8")
    A(f"v_add_u32 v3, s{S_U + 5}, v1")
    for c in range(4):
        A(f"v_mov_b32 v{24 + c}, v{8 + 4 * c}")
    A("ds_write_b128 v3, v[24:27]")
    A(f"s_mov_b32 s{S_U + 6}, 0x00003f80")
    A(f"s_mov_b32 s{S_U + 7}, 0x3f800000")
    A("s_waitcnt lgkmcnt(0)")
    A("s_barrier")
    for w in range(4):
        A(f"ds_read_b128 {v(8 + 4 * w, 4)}, v1 offset:{256 * w}")
    A("s_waitcnt lgkmcnt(0)")
    for w in range(1, 4):
        for h in range(2):
            A(f"v_pk_add_f32 {v(8 + 2 * h, 2)}, {v(8 + 2 * h, 2)}, {v(8 + 4 * w + 2 * h, 2)}")
    for c in range(4):
        A(f"v_mul_f32 v{8 + c}, {INV576 | 0x80000000}, v{8 + c}")
    for n in range(5):
        if n == 4:
            A(f"s_cmp_ge_u32 s{S_WAVE}, 2")
            A("s_cbranch_scc1 L_front_end")
        for c in range(4):
            t, f = 32 + 8 * (c & 1), SF + 16 * n + 4 * c
            for e in range(8):
                A(f"v_dot2_f32_bf16 v{t + e}, v{f + (e >> 1)}, s{S_U + 6 + (e & 1)}, v{8 + c}")
            A(f"s_add_u32 s{S_U + 5}, s{S_U + 3}, {c * 18432 + 4096 * n}")
            for k in range(4):
                A(f"v_cvt_pk_bf16_f32 v{f + k}, v{t + 2 * k}, v{t + 2 * k + 1}")
            A(f"buffer_store_dwordx4 {v(f, 4)}, v{SV + 1}, {ws}, s{S_U + 5} offen sc1")
    A("s_branch L_front_end")
    A("L_aux_w2:")
    for n in range(5):
        if n == 4:
            A(f"s_cmp_ge_u32 s{S_WAVE}, 2")
            A("s_cbranch_scc1 L_front_end")
        for c in range(4):
            A(f"s_add_u32 s{S_U + 5}, s{S_U + 3}, {c * 18432 + 4096 * n}")
            A(f"buffer_store_dwordx4 {v(SF + 16 * n + 4 * c, 4)}, v{SV + 1}, {ws}, s{S_U + 5} offen sc1")
    A("s_branch L_front_end")


def code_prefetch(A):
    A(f"s_getpc_b64 s[{S_T + 2}:{S_T + 3}]")
    A("L_cpf_pc:")
    A(f"s_sub_u32 s{S_T + 2}, s{S_T + 2}, L_cpf_pc-L_code_begin")
    A(f"s_subb_u32 s{S_T + 3}, s{S_T + 3}, 0")
    A(f"s_sub_u32 s{S_T + 4}, s{S_T + 4}, 16")
    A(f"s_lshl_b32 s{S_T + 4}, s{S_T + 4}, 13")
    A(f"v_lshl_add_u32 v96, v2, 7, s{S_T + 4}")
    A("v_min_u32 v96, L_code_end-L_code_begin-4, v96")
    A(f"v_add_co_u32 v96, vcc, s{S_T + 2}, v96")
    A(f"v_mov_b32 v97, s{S_T + 3}")
    A("v_addc_co_u32 v97, vcc, 0, v97, vcc")
    A("global_load_dword v98, v[96:97], off")


def front(A, name):
    del SLOW[:]
    kernel_head(A, name)
    A("L_code_begin:")
    A("s_cmp_ge_u32 s2, 256")
    A("s_cbranch_scc1 L_exit")
    stamp(A, 0)
    prof_clear(A)
    A(f"s_load_dwordx16 s[{S_P}:{S_P + 15}], s[0:1], 0")
    A(f"s_load_dwordx8 s[{S_P + 16}:{S_P + 23}], s[0:1], 64")
    A(f"s_load_dwordx4 s[{S_P + 24}:{S_P + 27}], s[0:1], 96")
    A(f"s_load_dwordx2 s[{S_P + 28}:{S_P + 29}], s[0:1], 112")
    A("v_lshrrev_b32 v1, 6, v0")
    A(f"v_readfirstlane_b32 s{S_WAVE}, v1")
    A("v_and_b32 v2, 63, v0")
    for i in range(4):
        A(f"v_mov_b32 v{GZ + i}, 0")
    A(f"s_mov_b32 s{S_SP}, 200000")
    A(f"s_and_b32 s{S_CW}, s2, 7")
    A(f"s_mul_i32 s{S_CW}, s{S_CW}, 18")
    A(f"s_lshr_b32 s{S_T}, s2, 3")
    A(f"s_add_u32 s{S_CW}, s{S_CW}, s{S_T}")
    A(f"s_lshl_b32 s{S_CH}, s{S_CW}, 2")
    A(f"s_add_u32 s{S_CH}, s{S_CH}, s{S_WAVE}")
    A(f"s_lshl_b32 s{S_U + 8}, s{S_CW}, 3")
    A(f"s_add_u32 s{S_U + 9}, s{S_U + 8}, 4608")
    A(f"v_mul_u32_u24 v{GA}, 9216, v0")
    A(f"v_lshlrev_b32 v{GA + 1}, 6, v0")
    A(f"v_add_u32 v{GA + 1}, {ST}, v{GA + 1}")
    A("s_waitcnt lgkmcnt(0)")
    srd(A, S_X, S_P, X_BYTES)
    srd(A, S_WS, S_P + 28, WS_END)
    srd(A, S_DBG, S_P + 26, 256)
    A("s_cmp_ge_u32 s2, 144")
    A("s_cbranch_scc1 L_aux")
    A(f"s_load_dwordx2 s[82:83], s[{S_P + 16}:{S_P + 17}], s{S_U + 8}")
    kgen_issue(A)
    A("s_barrier")
    w2c = CFG["w2c"] and not CFG["noshuf"]
    g = [gather(i) for i in range(8)]
    A.ext(g[:CFG["g0"]])
    del g[:CFG["g0"]]
    if w2c:
        conv_w2_issue(A)
    conv_setup(A, g)
    if g:
        A(g.pop(0))
    stamp(A, 1)
    A(f"s_waitcnt vmcnt({8 - len(g)})")
    kgen_valu(A, g)
    stamp(A, 2)
    kgen_contract(A)
    A(f"s_waitcnt vmcnt({8 if w2c else 4})")
    normalise(A)
    if w2c:
        A("s_waitcnt vmcnt(4)")
        shuf_read(A, AW, 0, a)
    A("s_waitcnt vmcnt(0)")
    stamp(A, 3)
    chk = [f"v_min_u32 v1, v{GS}, v{GS + 2}", f"v_min3_u32 v1, v1, v{GS + 4}, v{GS + 6}",
           f"v_min3_u32 v1, v1, v{GS + 8}, v{GS + 10}", f"v_min3_u32 v1, v1, v{GS + 12}, v{GS + 14}",
           "v_cmp_eq_u32 vcc, 0, v1"]
    A.ext(chk)
    A("s_cbranch_vccnz L_st_slow")
    A("L_st_back:")
    SLOW.append(["L_st_slow:", f"s_cmp_eq_u32 s{S_SP}, 0", "s_cbranch_scc1 L_st_back", f"s_sub_u32 s{S_SP}, s{S_SP}, 1",
                 "s_sleep 4"] + STLOAD + ["s_waitcnt vmcnt(0)"] + chk + ["s_cbranch_vccnz L_st_slow", "s_branch L_st_back"])
    normalise2(A)
    A("s_waitcnt lgkmcnt(0)")
    A("s_barrier")
    stamp(A, 4)
    conv_main(A)
    stamp(A, 6)
    A("L_front_end:")
    A(zf_scalar(128))


def out_of_line():
    B = Asm()
    B("L_aux:")
    aux_path(B)
    for code in SLOW:
        B.ext(code)
    return B.lines
```

```python
import sys
import common
if '--prof' in sys.argv:
    common.PROF = True
    sys.argv.remove('--prof')
if '--back' in sys.argv:
    common.PROF_SEL = 1
    sys.argv.remove('--back')
from common import *
import front3 as front, back3 as back
if '--step' in sys.argv:
    back.STEPPROF = True
    sys.argv.remove('--step')
AS_LIST = '--list' in sys.argv
if AS_LIST:
    sys.argv.remove('--list')
for a_ in [x for x in sys.argv if '=' in x]:
    k_, v_ = a_.split('=')
    (front.CFG if k_ in front.CFG else back.CFG)[k_] = int(v_)
    sys.argv.remove(a_)


def build():
    name = "k_kernel" if AS_LIST else NAME + "_kernel"
    A = Asm()
    front.front(A, name)
    back.ffn(A, front.S_P + 24, lambda B, vr, sp: front.zf_check(B, "f", 128, front.ZTARGET, vr, sp),
             front.late_w2_read, front.late_w2_store, front.late_w2_prev)
    A.ext(front.out_of_line())
    A("L_code_end:")
    lds = max(front.K12_LDS, back.K3_LDS)
    lines, added = pad_hazards(A.lines)
    lines, acost = align_pass(lines)
    ref = open(f"cdna_kernels/{NAME}.s.ref").read().split("\n")
    out = "\n".join(l for l in ref[:16] if l.startswith(";") and "@launch" not in l) + "\n"
    out += f"; @launch {'kernel=' + name + ' ' if AS_LIST else ''}grid=(256,1,1) block=(256,1,1) lds={lds}\n"
    out += '.amdgcn_target "amdgcn-amd-amdhsa--gfx950"\n.text\n' + "\n".join(lines) + "\n"
    out += '.section .rodata,"a"\n' + descriptor(name, 512, 256, 102 if common.PROF else 96)
    print("nop states added:", added, "align cost %.1f" % acost, "lines:", len(lines), file=sys.stderr)
    return out


if __name__ == "__main__":
    path = sys.argv[1] if len(sys.argv) > 1 else f"cdna_kernels/{NAME}.s"
    open(path, "w").write(build())
```

```python
from common import *
from front import cmul, mf

STG_ROW = 528
STG_WAVE = 56 * STG_ROW
IMG = 4 * STG_WAVE
LNB = IMG + 4096
LN_RS, LN_R = 1216, 9760
RED = 147456
K12_LDS = IMG + 36864

S_WAVE = 3
S_DBG, S_WS, S_X, S_D, S_W = 4, 8, 12, 16, 20
S_CH, S_KT = 24, 25
S_T = 26
S_P = 32
S_U = 62
S_SP, S_HO = 72, 73
CFG = dict(noshuf=0, cpf=1, g0=3, gj0=0, gstep=5, st_at=22, w2c=1, wnt=1, pnt=1, xnt=0, pf=1, se=1)

ws = f"s[{S_WS}:{S_WS + 3}]"
GP, GZ = 84, 92
GX = 164
GS = 180
GA = 136
S_CW, S_ZF = 75, 80
S_DS = 16
dbg = f"s[{S_DBG}:{S_DBG + 3}]"
xs = f"s[{S_X}:{S_X + 3}]"
ZTARGET = 24


def gather(i):
    return f"buffer_load_dwordx2 {v(GX + 2 * i, 2)}, v{GA}, {xs}, s{S_U + 8 + i // 4} offen offset:{1152 * (i % 4)}"


STLOAD = [f"buffer_load_dwordx4 {v(GS + 4 * k, 4)}, v{GA + 1}, {ws}, 0 offen offset:{16 * k} sc1" for k in range(4)]


def zf_scalar(off):
    return f"s_load_dword s{S_ZF}, s[{S_P + 26}:{S_P + 27}], {off}"


def zf_check(A, tag, off, target, vr, sp=None):
    sp = S_SP if sp is None else sp
    A("s_waitcnt lgkmcnt(0)")
    A(f"s_cmp_lt_u32 s{S_ZF}, {target}")
    A(f"s_cbranch_scc1 L_zf{tag}")
    A(f"L_zfok{tag}:")
    SLOW.append([f"L_zf{tag}:", f"v_mov_b32 v{vr}, {off}", f"global_load_dword v{vr}, v{vr}, s[{S_P + 26}:{S_P + 27}] sc1",
                 "s_waitcnt vmcnt(0)", f"v_cmp_gt_u32 vcc, {target}, v{vr}", f"s_cbranch_vccz L_zfok{tag}",
                 f"s_cmp_eq_u32 s{sp}, 0", f"s_cbranch_scc1 L_zfok{tag}", f"s_sub_u32 s{sp}, s{sp}, 1",
                 "s_sleep 2", f"s_branch L_zf{tag}"])


XF, UF, NPK = 40, 72, 196


def normalise1():
    out = []
    for b in range(4):
        for k in range(4):
            r = GX + 4 * k + (b >> 1)
            out.append(f"v_perm_b32 v{NPK + 16 + 4 * b + k}, v{r + 2}, v{r}, s{S_DS + 1 + (b & 1)}")
        out += [f"v_xor_b32 v3, {64 + 16 * b}, v{CO}", f"ds_write_b128 v3, {v(NPK + 16 + 4 * b, 4)}"]
    for i in range(16):
        out += [f"v_lshlrev_b32 v{XF + 2 * i}, 16, v{GX + i}", f"v_and_b32 v{XF + 2 * i + 1}, 0xffff0000, v{GX + i}"]
    return out


def normalise2(A):
    for h in range(2):
        for i in range(8):
            sp, r = v(GS + 2 * i, 2), 4 * i + 2 * h
            A(f"v_pk_fma_f32 {v(UF + r, 2)}, {v(XF + r, 2)}, {sp}, {sp} op_sel:[0,0,1] op_sel_hi:[1,0,1]")
        for b in (2 * h, 2 * h + 1):
            for k in range(4):
                A(f"v_cvt_pk_bf16_f32 v{NPK + 4 * b + k}, v{UF + 8 * k + b}, v{UF + 8 * k + 4 + b}")
            A(f"v_xor_b32 v1, {16 * b}, v{CO}")
            A(f"ds_write_b128 v1, {v(NPK + 4 * b, 4)}")


SLOW = []


def spin(tag, load, target, reg):
    SLOW.append([f"L_slow{tag}:", f"s_cmp_eq_u32 s{S_SP}, 0", f"s_cbranch_scc1 L_back{tag}", f"s_sub_u32 s{S_SP}, s{S_SP}, 1",
                 "s_sleep 1"] + load + ["s_waitcnt vmcnt(0)", f"v_cmp_ne_u32 vcc, {target}, v{reg}",
                 f"s_cbranch_vccnz L_slow{tag}", f"s_branch L_back{tag}"])
    return [f"v_cmp_ne_u32 vcc, {target}, v{reg}", f"s_cbranch_vccnz L_slow{tag}", f"L_back{tag}:"]


def kgen_issue(A):
    A(f"s_lshl_b32 s{S_T + 2}, s{S_CH}, 8")
    A(f"v_lshl_add_u32 v1, v2, 2, s{S_T + 2}")
    for i in range(6):
        A(f"global_load_dword v{GP + i}, v1, s[{S_P + 2 + 2 * i}:{S_P + 3 + 2 * i}]{' nt' if CFG['pnt'] else ''}")
    A(f"s_lshl_b32 s{S_T + 2}, s{S_CH}, 1")
    A(f"v_mov_b32 v1, s{S_T + 2}")
    A(f"global_load_ushort v{GP + 6}, v1, s[{S_P + 14}:{S_P + 15}]")


def kgen_valu(A, glate):
    U, DT, ADR = 4, 16, 17
    for i in range(6):
        A(f"v_lshlrev_b32 v{U + 2 * i}, 16, v{GP + i}")
        A(f"v_and_b32 v{U + 2 * i + 1}, 0xffff0000, v{GP + i}")
    A(f"v_lshlrev_b32 v{DT}, 16, v{GP + 6}")
    A(f"v_mul_f32 v{DT}, {LOG2E}, v{DT}")
    A(f"v_exp_f32 v{DT}, v{DT}")
    A(f"s_mul_i32 s{S_T}, s{S_WAVE}, {STG_WAVE}")
    A(f"v_lshl_add_u32 v{ADR}, v2, 3, s{S_T}")
    A(f"v_cvt_pk_bf16_f32 v{DT}, v{DT}, v{DT}")
    A(f"v_and_b32 v{DT}, 0xffff0000, v{DT}")
    for i in range(4):
        A(f"v_pk_mul_f32 {v(U + 2 * i, 2)}, {v(U + 2 * i, 2)}, {v(DT, 2)} op_sel_hi:[1,0]")
    for m in range(2):
        A(f"v_mul_f32 v{U + m}, {LOG2E}, v{U + m}")
        A(f"v_mul_f32 v{U + 2 + m}, {INV2PI}, v{U + 2 + m}")
    if glate:
        A(glate.pop(0))
    names = ["z1", "z8", "w", "z2", "z3", "z4", "z6", "t0", "t1", "p0", "p1", "y0", "y1"]
    R = {n: 48 + 4 * i if i < 8 else 100 + 4 * (i - 8) for i, n in enumerate(names)}
    TMP = 20
    for nm, lit in (("z8", "0x41000000"), ("z1", None), ("w", "0x43800000")):
        if lit:
            for m in range(2):
                A(f"v_mul_f32 v{TMP + m}, {lit}, v{U + m}")
                A(f"v_mul_f32 v{TMP + 2 + m}, {lit}, v{U + 2 + m}")
        src = TMP if lit else U
        for m in range(2):
            A(f"v_fract_f32 v{TMP + 2 + m}, v{src + 2 + m}")
        for m in range(2):
            A(f"v_exp_f32 v{TMP + m}, v{src + m}")
        for m in range(2):
            A(f"v_cos_f32 v{R[nm] + 2 * m}, v{TMP + 2 + m}")
            A(f"v_sin_f32 v{R[nm] + 2 * m + 1}, v{TMP + 2 + m}")
        A(f"v_pk_mul_f32 {v(R[nm], 2)}, {v(R[nm], 2)}, {v(TMP, 2)} op_sel_hi:[1,0]")
        A(f"v_pk_mul_f32 {v(R[nm] + 2, 2)}, {v(R[nm] + 2, 2)}, {v(TMP, 2)} op_sel:[0,1] op_sel_hi:[1,1]")
    for m in range(2):
        y = R["y0"] + 2 * m
        A(f"v_mul_f32 v{y}, v{U + 8 + m}, v{U + 4 + m}")
        A(f"v_mul_f32 v{y + 1}, v{U + 8 + m}, v{U + 6 + m}")
    for m in range(2):
        y = R["y0"] + 2 * m
        A(f"v_fma_f32 v{y}, -v{U + 10 + m}, v{U + 6 + m}, v{y}")
        A(f"v_fma_f32 v{y + 1}, v{U + 10 + m}, v{U + 4 + m}, v{y + 1}")
    offs = [[0, 1, 2, 3, 4, 5, 6, 7], [256, 256, 258, 260, 260, 260, 262, 264]]
    rows = {}
    for hi in range(2):
        for i in range(12):
            e = offs[hi][i] if i < 8 else (520, 516, 1032, 1544)[i - 8] + 256 * hi
            rows.setdefault(e, []).append(8 * (i >> 2) + 4 * hi + (i & 3))
    PK = [84, 86, 88, 90]
    pk = [0]

    def emit(reg, rws, neg):
        d = PK[pk[0] % 4]
        pk[0] += 1
        n = "-" if neg else ""
        out = [f"v_cvt_pk_bf16_f32 v{d + m}, v{reg + 2 * m}, {n}v{reg + 2 * m + 1}" for m in range(2)]
        out += [f"ds_write_b64 v{ADR}, {v(d, 2)} offset:{r * STG_ROW}" for r in rws]
        return out

    def both(d, x, y):
        c0, c1 = cmul(R[d], R[x], R[y]), cmul(R[d] + 2, R[x] + 2, R[y] + 2)
        return [c0[0], c1[0], c0[1], c1[1]]
    A("v_mov_b32 v24, 0x3f80")
    A("v_mov_b32 v25, 0x3f80")
    A.ext([f"ds_write_b64 v{ADR}, v[24:25] offset:{r * STG_ROW}" for r in rows[0]])
    A.ext(emit(R["z1"], rows[1], 0) + emit(R["w"], rows[256], 0))
    chain = [("z2", "z1", "z1", 2), ("p0", "w", "z8", 264), ("z3", "z2", "z1", 3), ("z4", "z2", "z2", 4),
             ("p1", "p0", "w", 520), ("t0", "w", "z2", 258), ("t1", "z4", "z1", 5), ("p0", "p1", "w", 776),
             ("z6", "z4", "z2", 6), ("t0", "z4", "z3", 7), ("p1", "p0", "w", 1032), ("t1", "w", "z4", 260),
             ("t0", "w", "z6", 262), ("p0", "p1", "w", 1288), ("z3", "t1", "w", 516), ("p1", "p0", "w", 1544),
             ("t0", "z3", "w", 772), ("p0", "p1", "w", 1800)]
    xi = iter(chain)
    cur, nxt = "y0", "y1"
    for j in range(32):
        if glate and j >= CFG["gj0"] and (j - CFG["gj0"]) % CFG["gstep"] == 0:
            A(glate.pop(0))
        if j == CFG["st_at"]:
            A.ext(glate)
            del glate[:]
            A(zf_scalar(0))
        ops = both(nxt, cur, "z8") if j < 31 else []
        ey = emit(R[cur], [24 + j], 1)
        A.ext(ops[:2] + ey[:2] + ops[2:] + ey[2:])
        c = next(xi, None)
        if c:
            A.ext(both(c[0], c[1], c[2]))
            A.ext(emit(R[c[0]], rows[c[3]], 0))
        cur, nxt = nxt, cur


def kgen_contract(A):
    ACC = 4
    A("v_and_b32 v1, 31, v2")
    A(f"v_mul_u32_u24 v1, {STG_ROW}, v1")
    A("v_lshrrev_b32 v3, 5, v2")
    A("v_lshl_add_u32 v1, v3, 4, v1")
    A(f"v_add_u32 v1, s{S_T}, v1")
    lg = Cnt("lgkmcnt", 15)
    zf_check(A, "c", 0, 1, 3)
    A.ext(STLOAD)

    def rd(k):
        lg.issue()
        lg.issue(("f", k))
        return [f"ds_read_b128 {a(4 * k, 4)}, v1 offset:{32 * k}",
                f"ds_read_b128 {a(64 + 4 * k, 4)}, v1 offset:{32 * k + 24 * STG_ROW}"]
    AHEAD = 6
    for k in range(AHEAD):
        A.ext(rd(k))
    for k in range(16):
        A.ext(lg.wait(("f", k)))
        A(f"v_mfma_f32_32x32x16_bf16 {v(ACC, 16)}, {a(4 * k, 4)}, {a(64 + 4 * k, 4)}, {'0' if k == 0 else v(ACC, 16)}")
        if k + AHEAD < 16:
            A.ext(rd(k + AHEAD))
    D0, D2, D1, D3, Z = 24, 28, 32, 36, GZ
    A(f"v_add_f32 v{ACC}, v{ACC}, v{TA + 7}")
    for k in range(4):
        A(f"v_cvt_pk_bf16_f32 v{D0 + k}, v{ACC + 2 * k}, v{ACC + 2 * k + 1}")
    A(f"v_cvt_pk_bf16_f32 v20, v{ACC + 8}, v{ACC + 9}")
    A(f"v_cvt_pk_bf16_f32 v21, v{ACC + 10}, v{ACC + 11}")
    A(f"ds_write_b128 v{TA}, {v(D0, 4)} offset:32")
    A(f"v_mov_b32_dpp v{D2}, v{D0 + 3} wave_shr:1 row_mask:0xf bank_mask:0xf bound_ctrl:1")
    A(f"v_mov_b32_dpp v22, v{D0 + 2} wave_shr:1 row_mask:0xf bank_mask:0xf bound_ctrl:1")
    for k in range(3):
        A(f"v_mov_b32 v{D2 + 1 + k}, v{D0 + k}")
    A(f"v_readlane_b32 s{S_T + 1}, v{D0 + 2}, 63")
    A(f"v_readlane_b32 s{S_T + 2}, v{D0 + 3}, 63")
    A(f"v_readlane_b32 s{S_T + 5}, v20, 63")
    A(f"ds_write_b128 v{TA}, {v(D2, 4)} offset:{32 + 2 * TSTR}")
    for k in range(4):
        A(f"v_alignbit_b32 v{D1 + k}, v{D0 + k}, v{D2 + k}, 16")
    A(f"ds_write_b128 v{TA}, {v(D1, 4)} offset:{32 + TSTR}")
    A(f"v_alignbit_b32 v{D3}, v{D2}, v22, 16")
    for k in range(3):
        A(f"v_mov_b32 v{D3 + 1 + k}, v{D1 + k}")
    A(f"ds_write_b128 v{TA}, {v(D3, 4)} offset:{32 + 3 * TSTR}")
    A(f"s_lshr_b32 s{S_T + 1}, s{S_T + 1}, 16")
    A(f"s_pack_ll_b32_b16 s{S_T + 1}, s{S_T + 1}, s{S_T + 2}")
    A(f"s_pack_hh_b32_b16 s{S_T + 3}, s{S_T + 2}, s{S_T + 2}")
    A(f"s_lshr_b32 s{S_T + 4}, s{S_T + 2}, 16")
    A(f"s_pack_ll_b32_b16 s{S_T + 5}, s{S_T + 5}, s{S_T + 5}")
    AA, BB, KK, K0 = S_T + 1, S_T + 2, S_T + 3, S_T + 4
    for r, row in enumerate(((KK, K0), (KK, KK), (BB, KK, K0), (AA, KK, KK))):
        for k, sr in enumerate(row):
            A(f"v_writelane_b32 v{Z + k}, s{sr}, {8 * r + 2}")
    A(f"ds_write_b32 v{TA + 1}, v20")
    A(f"ds_write_b16 v{TA + 2}, v21 offset:128")
    A(f"ds_write_b16_d16_hi v{TA + 2}, v21")
    A(f"ds_write_b128 v{TA + 3}, {v(Z, 4)}")
    for k in range(4):
        A(f"v_and_b32 v{CF + k}, s{S_T + 5}, v{CF + k}")
    for i in (4, 6, 8, 3, 5, 7):
        A(f"ds_read2_b64 {a(A2 + 4 * (i - 3), 4)}, v{TA + 4} offset0:{8 * (8 - i)} offset1:{8 * (8 - i) + 1}")
    for i in range(4, 8):
        for h in range(2):
            o = 16 * (7 - i) + 2 * h
            A(f"ds_read2_b32 {a(A3 + 4 * (i - 4) + 2 * h, 2)}, v{TA + 5} offset0:{o} offset1:{o + 1}")
    for q in range(17):
        for h in range(2):
            A(f"ds_read_b64_tr_b16 {a(AK + 4 * q + 2 * h, 2)}, v{TA + 6} offset:{64 * q + 8 * (1 - h)}")


CA = 4
AK, A2, A3, AW = 128, 196, 220, 236
TA = 128
TSTR, TB2 = 1216, 4864
CF = 144
CB = 148
CU = 164
CD = 196
CW = 220
CAD = 232
CO = 244


def conv_setup(A, glate):
    A("v_lshlrev_b32 v1, 4, v0")
    A(f"v_add_u32 v1, {IMG}, v1")
    A(f"ds_write_b128 v1, {v(GZ, 4)}")
    lo, g, dl, t = CD, CD + 1, CD + 2, CD + 4
    A(f"v_and_b32 v{lo}, 15, v2")
    A(f"v_lshrrev_b32 v{g}, 4, v2")
    A(f"v_lshlrev_b32 v{dl}, 3, v{g}")
    A(f"v_sub_u32 v{dl}, v{lo}, v{dl}")
    A(f"s_mov_b32 s{S_T + 3}, 0x8001")
    A(f"s_mov_b32 s{S_T + 4}, 0x10001")
    bands = [(6, 10, CB, 0x3f80), (11, 13, CB + 4, 0x3f80), (4, 12, CB + 8, 0x3f80), (5, 11, CB + 12, 0x3f80),
             (12, 13, CF, 0xffff)]
    for b0, b1, d, one in bands:
        A(f"v_add_u32 v{t + 2}, {b0 + 32}, v{dl}")
        A(f"v_mov_b32 v{t}, {(1 << (b1 - b0 + 1)) - 1}")
        A(f"v_mov_b32 v{t + 1}, 0")
        A(f"v_lshlrev_b64 {v(t, 2)}, v{t + 2}, {v(t, 2)}")
        for k in range(4):
            A(f"v_bfe_u32 v{d + k}, v{t + 1}, {2 * k}, 2")
        for k in range(4):
            A(f"v_mul_u32_u24 v{d + k}, s{S_T + 3}, v{d + k}")
        for k in range(4):
            A(f"v_and_b32 v{d + k}, s{S_T + 4}, v{d + k}")
        for k in range(4):
            A(f"v_mul_u32_u24 v{d + k}, {one}, v{d + k}")
    if glate:
        A(glate.pop(0))
    A(f"s_mov_b32 s{S_T + 3}, {IMG}")

    def addr(dst, row, piece_extra=0):
        A(f"v_bfe_u32 v{t}, v{row}, 1, 3")
        A(f"v_xor_b32 v{t}, s{S_WAVE}, v{t}")
        if piece_extra:
            A(f"v_xor_b32 v{t}, {piece_extra}, v{t}")
        A(f"v_lshl_add_u32 v{t}, v{t}, 4, s{S_T + 3}")
        A(f"v_lshl_add_u32 v{dst}, v{row}, 7, v{t}")
    row, r2 = t + 2, t + 3
    A(f"v_lshl_add_u32 v{r2}, v{lo}, 1, v{g}")
    for r in range(4, 8):
        A(f"v_add_u32 v{row}, {30 - 4 * r}, v{r2}")
        addr(CAD + r - 4, row)
    A(f"v_add3_u32 v{row}, v{lo}, v{g}, 29")
    addr(CAD + 4, row)
    A(f"v_add_u32 v{row}, 29, v{r2}")
    addr(CAD + 5, row)
    A(f"v_lshrrev_b32 v{r2}, 1, v{g}")
    A(f"v_lshl_add_u32 v{row}, v{lo}, 1, v{r2}")
    A(f"v_add_u32 v{row}, 32, v{row}")
    addr(CAD + 6, row, 4)
    A(f"v_and_b32 v{row}, 1, v{g}")
    A(f"v_lshl_add_u32 v{CAD + 6}, v{row}, 3, v{CAD + 6}")
    A(f"v_lshrrev_b32 v{t}, 2, v{lo}")
    A(f"v_lshl_add_u32 v{t}, v{row}, 2, v{t}")
    A(f"v_mul_u32_u24 v{t}, 73728, v{t}")
    A(f"s_bfe_u32 s{S_T + 4}, s{S_CH}, 0x20001")
    A(f"v_and_b32 v{t + 1}, 3, v{lo}")
    A(f"v_xor_b32 v{t + 1}, s{S_T + 4}, v{t + 1}")
    A(f"v_lshl_add_u32 v{t}, v{t + 1}, 5, v{t}")
    A(f"v_lshl_add_u32 v{CAD + 7}, v{r2}, 4, v{t}")
    A(f"s_lshl_b32 s{S_HO}, s{S_CH}, 7")
    A(f"s_add_u32 s{S_HO}, s{S_HO}, {HT}")
    A(f"s_mul_i32 s{S_T + 3}, s{S_WAVE}, {STG_WAVE}")
    A(f"v_lshl_add_u32 v{TA}, v2, 4, s{S_T + 3}")
    A(f"s_add_u32 s{S_T + 4}, s{S_T + 3}, {TB2 + R2B + 380}")
    A(f"v_lshlrev_b32 v{t}, 2, v2")
    A(f"v_sub_u32 v{TA + 1}, s{S_T + 4}, v{t}")
    A(f"s_add_u32 s{S_T + 4}, s{S_T + 3}, {TB2 + R3B + 126}")
    A(f"v_lshlrev_b32 v{t}, 1, v2")
    A(f"v_sub_u32 v{TA + 2}, s{S_T + 4}, v{t}")
    A(f"v_and_b32 v{t}, 7, v2")
    A(f"v_lshrrev_b32 v{t + 1}, 1, v{t}")
    A(f"v_min_u32 v{t + 1}, 1, v{t + 1}")
    A(f"v_lshlrev_b32 v{t + 1}, 10, v{t + 1}")
    A(f"v_bfe_u32 v{row}, v2, 3, 2")
    A(f"v_mul_u32_u24 v{r2}, {TSTR}, v{row}")
    A(f"v_add_u32 v{t + 1}, v{t + 1}, v{r2}")
    A(f"v_and_b32 v{row}, 1, v{row}")
    A(f"v_mul_u32_u24 v{row}, 384, v{row}")
    A(f"v_add_u32 v{row}, {TB2 + 256}, v{row}")
    A("v_cmp_gt_u32 vcc, 32, v2")
    A(f"v_cndmask_b32 v{t + 1}, v{row}, v{t + 1}, vcc")
    A(f"v_lshl_add_u32 v{t}, v{t}, 4, s{S_T + 3}")
    A(f"v_add_u32 v{TA + 3}, v{t}, v{t + 1}")
    A(f"v_and_b32 v{g}, 48, v2")
    A(f"v_add_u32 v{r2}, s{S_T + 3}, v{g}")
    A(f"v_lshlrev_b32 v{t}, 3, v{lo}")
    A(f"v_sub_u32 v{t}, v{r2}, v{t}")
    A(f"v_add_u32 v{TA + 4}, {TB2 + R2B + 120}, v{t}")
    A(f"v_lshlrev_b32 v{t}, 2, v{lo}")
    A(f"v_sub_u32 v{t}, v{r2}, v{t}")
    A(f"v_add_u32 v{TA + 5}, {TB2 + R3B + 60}, v{t}")
    A(f"v_bfe_u32 v{t}, v2, 2, 2")
    A(f"v_mul_u32_u24 v{t}, {TSTR}, v{t}")
    A(f"v_and_b32 v{t + 1}, 3, v2")
    A(f"v_lshl_add_u32 v{t}, v{t + 1}, 3, v{t}")
    A(f"v_sub_u32 v{t}, v{t}, v{g}")
    A(f"v_add3_u32 v{TA + 6}, v{t}, s{S_T + 3}, 56")
    A(f"v_lshlrev_b32 v{CAD + 11}, 4, v2")
    A(f"v_bfe_u32 v{t}, v0, 1, 3")
    A(f"v_lshlrev_b32 v{t}, 4, v{t}")
    A(f"v_lshl_add_u32 v{t}, v0, 7, v{t}")
    A(f"v_add_u32 v{CO}, {IMG + 4096}, v{t}")
    A("s_waitcnt lgkmcnt(0)")
    A(f"s_bitcmp1_b32 s{S_WAVE}, 1")
    A(f"s_cselect_b32 s{S_DS}, s83, s82")
    A(f"s_lshl_b32 s{S_DS + 1}, s{S_DS}, 16")
    A(f"s_and_b32 s{S_DS + 2}, s{S_DS}, 0xffff0000")
    A(f"s_bitcmp1_b32 s{S_WAVE}, 0")
    A(f"s_cselect_b32 s{S_DS}, s{S_DS + 2}, s{S_DS + 1}")
    A(f"v_mov_b32 v{TA + 7}, 0")
    A(f"v_writelane_b32 v{TA + 7}, s{S_DS}, 0")
    A(f"s_mov_b32 s{S_DS + 1}, 0x05040100")
    A(f"s_mov_b32 s{S_DS + 2}, 0x07060302")


def mfx(d, x, y, c):
    return f"v_mfma_f32_16x16x32_bf16 {v(d, 4)}, {x}, {y}, {c if isinstance(c, str) else v(c, 4)}"


def conv_main(A):
    lg = Cnt("lgkmcnt", 15)
    reads = [("x2", j, CAD + 4, 2048 * j) for j in range(12)]
    for j in range(4):
        reads += [("x3e", j, CAD + 5, 4096 * j), ("x3o", j, CAD + 0, 2048 + 4096 * j)]
    for Tp in range(8):
        for r in range(8):
            reads.append(("d", (Tp, r), CAD + (r & 3), (2048 if r < 4 else 0) + 4096 * Tp))
    slot = {(k, i): CU + 4 * (n % 8) for n, (k, i, _, _) in enumerate(reads)}
    nxt = [0]
    started = set()

    def put(it):
        if it == "rd":
            if nxt[0] < len(reads):
                k, i, ad, off = reads[nxt[0]]
                nxt[0] += 1
                lg.issue((k, i))
                A(f"ds_read_b128 {v(slot[(k, i)], 4)}, v{ad} offset:{off}")
        elif isinstance(it, tuple):
            if it[0] == "lg":
                lg.issue(it[1])
                A(it[2])
            else:
                A.ext(lg.wait(it[1]))
        else:
            A(it)

    def acc(T, x, y):
        c = CA + 4 * T if T in started else "0"
        started.add(T)
        return mfx(CA + 4 * T, x, y, c)

    def weave(ms, fill):
        fill = list(fill)
        for i, (w, m) in enumerate(ms):
            for x in w:
                put(x)
            A(m)
            n = len(fill) if i == len(ms) - 1 else 2 - min(1, len(ms[i + 1][0]))
            for x in fill[:n]:
                put(x)
            fill = fill[n:]
    for _ in range(6):
        put("rd")
    boxes = [("x2", j) for j in range(12)] + [("x3", j) for j in range(4)]
    NB = len(boxes)
    for n in range(NB + 2):
        ms, f1, cv = [], [], []
        if n >= 2:
            k, j = boxes[n - 2]
            w = CW + 4 * ((n - 2) % 3)
            for T in range(8):
                if k == "x2" and 3 <= 2 * T - j <= 8:
                    ms.append(([], acc(T, v(w, 4), a(A2 + 4 * (2 * T - j - 3), 4))))
                if k == "x3" and 4 <= T - j <= 7:
                    ms.append(([], acc(T, v(w, 4), a(A3 + 4 * (T - j - 4), 4))))
        if n < NB:
            k, j = boxes[n]
            d = CD + 8 * (n % 3)
            if k == "x2":
                ms = [([("lgw", ("x2", j))], mf(d, slot[("x2", j)], CB, "0")), ([], mf(d + 4, slot[("x2", j)], CB + 4, "0"))] + ms
                f1 = ["rd"]
            else:
                ms = [([("lgw", ("x3o", j))], mf(d, slot[("x3e", j)], CB + 8, "0")), ([], mf(d + 4, slot[("x3o", j)], CB + 12, "0"))] + ms
                f1 = ["rd", "rd"]
        if 1 <= n <= NB:
            d = CD + 8 * ((n - 1) % 3)
            cv = [f"v_cvt_pk_bf16_f32 v{CW + 4 * ((n - 1) % 3) + i}, v{d + i}, v{d + 4 + i}" for i in range(4)]
        weave(ms, f1 + cv)
    stamp(A, 5)

    def epi(T):
        o, rr, tm = CO + 2 * (T & 1), CO + 4, CD
        out = [("lgw", ("r", T))]
        for h in range(2):
            out += [f"v_lshlrev_b32 v{tm + 2 * h}, 16, v{rr + h}", f"v_and_b32 v{tm + 2 * h + 1}, 0xffff0000, v{rr + h}"]
        out += [f"v_add_f32 v{tm + i}, v{tm + i}, v{CA + 4 * T + i}" for i in range(4)]
        out += [f"v_cvt_pk_bf16_f32 v{o + h}, v{tm + 2 * h}, v{tm + 2 * h + 1}" for h in range(2)]
        if T & 1:
            out += [f"s_add_u32 s{S_T}, s{S_HO}, {294912 * (T - 1)}", f"v_permlane16_swap_b32 v{CO}, v{CO + 2}",
                    f"v_permlane16_swap_b32 v{CO + 1}, v{CO + 3}",
                    f"buffer_store_dwordx4 {v(CO, 4)}, v{CAD + 7}, {ws}, s{S_T} offen sc1"]
        return out
    pend = []
    for Tp in range(8):
        for r in range(8):
            u = v(slot[("d", (Tp, r))], 4)
            ms = [([("lgw", ("d", (Tp, r)))], acc(Tp, a(AK + 4 * r, 4), u))]
            if Tp + 1 < 8:
                ms.append(([], acc(Tp + 1, a(AK + 4 * r + 32, 4), u)))
            if r == 0:
                if Tp + 2 < 8:
                    ms.append(([], acc(Tp + 2, a(AK + 64, 4), u)))
                if Tp + 4 < 8:
                    ms.append(([], acc(Tp + 4, v(CF, 4), u)))
            if r & 1:
                ms = [(ms[0][0], m) if i == 0 else ([], m) for i, m in enumerate([x[1] for x in ms][::-1])]
            take = 2 if r >= 1 else 0
            fl, pend = pend[:take + (1 if pend and isinstance(pend[0], tuple) else 0)] if take else [], pend[take + (1 if pend and isinstance(pend[0], tuple) else 0):] if take else pend
            extra = conv_w2_store(Tp) if (r == 0 and Tp < 4) else []
            if r == 7:
                fl, pend = fl + pend, []
                extra = [("lg", ("r", Tp), f"ds_read_b64 {v(CO + 4, 2)}, v{CAD + 6} offset:{4096 * Tp}")]
            weave(ms, fl + extra + ["rd"])
        pend = epi(Tp)
    for x in pend:
        put(x)


SH = 120
SV = 124
SF = 128


def shuf_addr(A, lds_base):
    A("v_lshrrev_b32 v1, 3, v2")
    A(f"v_mul_u32_u24 v{SV}, s{S_U + 1}, v1")
    A("v_lshrrev_b32 v1, 4, v2")
    A("v_lshlrev_b32 v1, 1, v1")
    A("v_xor_b32 v1, v1, v2")
    A("v_and_b32 v1, 7, v1")
    A(f"v_lshl_add_u32 v{SV}, v1, 4, v{SV}")
    A("v_lshrrev_b32 v1, 2, v2")
    A(f"v_lshl_add_u32 v{SH}, v1, 7, s{lds_base}")
    A("v_bfe_u32 v1, v2, 3, 2")
    A(f"v_lshl_add_u32 v{SH}, v1, 5, v{SH}")
    A("v_and_b32 v1, 3, v2")
    A(f"v_lshl_add_u32 v{SH}, v1, 3, v{SH}")
    for m in range(1, 4):
        A(f"v_xor_b32 v{SH + m}, {32 * m}, v{SH}")
    A(f"v_lshlrev_b32 v{SV + 1}, 4, v2")


def shuf_dma(A, lds_off):
    for q in range(4):
        A(f"s_add_u32 m0, s{S_U + 4}, {lds_off + 1024 * q}")
        if q:
            A(f"s_add_u32 s{S_U + 2}, s{S_U + 2}, s{S_U + 6}")
        A(f"buffer_load_dwordx4 v{SV}, s[{S_W}:{S_W + 3}], s{S_U + 2} offen {'nt ' if CFG['wnt'] else ''}lds")
    A(f"s_add_u32 s{S_U + 2}, s{S_U + 2}, s{S_U + 7}")


def shuf_read(A, dst, off, reg=v):
    for c in range(4):
        for h in range(2):
            A(f"ds_read_b64_tr_b16 {reg(dst + 4 * c + 2 * h, 2)}, v{SH + c} offset:{off + 2048 * h}")


def w2_task(A):
    unit, ks = S_T + 2, S_T + 3
    srd(A, S_W, S_P + 22, W_BYTES)
    A(f"s_mul_hi_u32 s{unit}, s{S_T + 4}, 0xe38e38f")
    A(f"s_mul_i32 s{ks}, s{unit}, 18")
    A(f"s_sub_u32 s{ks}, s{S_T + 4}, s{ks}")
    A(f"s_mul_hi_u32 s{S_U + 2}, s{unit}, 0x1c71c71d")
    A(f"s_mul_i32 s{S_U + 2}, s{S_U + 2}, {576 * 1152 - 9 * 128}")
    A(f"s_lshl_b32 s{S_U + 3}, s{unit}, 7")
    A(f"s_add_u32 s{S_U + 2}, s{S_U + 2}, s{S_U + 3}")
    A(f"s_mul_i32 s{S_U + 3}, s{ks}, {32 * 1152}")
    A(f"s_add_u32 s{S_U + 2}, s{S_U + 2}, s{S_U + 3}")
    A(f"s_mul_i32 s{S_U + 3}, s{unit}, 73728")
    A(f"s_lshl_b32 s{S_U + 5}, s{ks}, 10")
    A(f"s_add_u32 s{S_U + 3}, s{S_U + 3}, s{S_U + 5}")
    A(f"s_add_u32 s{S_U + 3}, s{S_U + 3}, {W2S}")
    A(f"s_mov_b32 s{S_U + 1}, 1152")
    A(f"s_mov_b32 s{S_U + 6}, {8 * 1152}")
    A(f"s_mov_b32 s{S_U + 7}, {8 * 1152}")


def conv_w2_issue(A):
    A(f"s_add_u32 s{S_T + 4}, s{S_CH}, 720")
    w2_task(A)
    A(f"s_lshl_b32 s{S_U + 4}, s{S_WAVE}, 13")
    A(f"s_add_u32 s{S_U + 4}, s{S_U + 4}, {IMG + 4096}")
    shuf_addr(A, S_U + 4)
    shuf_dma(A, 0)


def conv_w2_store(c):
    return [f"buffer_store_dwordx4 {a(AW + 4 * c, 4)}, v{CAD + 11}, {ws}, s{S_U + 3} offen sc1",
            f"s_add_u32 s{S_U + 3}, s{S_U + 3}, 18432"]


def aux_stats(A):
    A(f"s_sub_u32 s{S_T}, s2, 216")
    A("s_cmp_lg_u32 s2, 248")
    A("s_cbranch_scc1 L_aux_0")
    A("v_lshlrev_b32 v1, 4, v0")
    for i in range(4):
        A(f"s_mov_b32 s{S_T + 1}, {ST + 4096 * i}")
        A(f"buffer_store_dwordx4 {v(GZ, 4)}, v1, {ws}, s{S_T + 1} offen sc1")
    A("L_aux_0:")
    A(f"s_mul_i32 s{S_T + 1}, s{S_WAVE}, 40")
    A(f"s_add_u32 s{S_T + 1}, s{S_T + 1}, s{S_T}")
    A("v_lshrrev_b32 v1, 3, v2")
    A("v_mul_u32_u24 v3, 1152, v1")
    A("v_and_b32 v4, 7, v2")
    A("v_lshl_add_u32 v3, v4, 4, v3")
    A(f"s_mul_i32 s{S_T + 2}, s{S_T + 1}, 9216")
    A(f"v_add_u32 v3, s{S_T + 2}, v3")
    A(f"v_add_u32 v5, {160 * 9216}, v3")
    nt = " nt" if CFG["xnt"] & 1 else ""
    for p in range(2):
        for i in range(9):
            A(f"buffer_load_dwordx4 {v(12 + 36 * p + 4 * i, 4)}, v{3 + 2 * p}, {xs}, 0 offen offset:{128 * i}{nt}")
    A("v_min_u32 v4, 1, v4")
    A("v_lshlrev_b32 v4, 31, v4")
    A("v_lshl_add_u32 v4, v1, 3, v4")
    A("s_cmp_lg_u32 s2, 248")
    A("s_cbranch_scc1 L_aux_1")
    A("v_mov_b32 v1, 1")
    A("s_waitcnt vmcnt(18)")
    A("s_barrier")
    A(f"s_cmp_lg_u32 s{S_WAVE}, 3")
    A("s_cbranch_scc1 L_aux_1")
    A("s_mov_b64 exec, 1")
    A(f"buffer_store_dword v1, off, {dbg}, 0 sc1")
    A("s_mov_b64 exec, -1")
    A("L_aux_1:")
    A(f"s_cmp_lt_u32 s{S_T + 1}, 96")
    A("s_cbranch_scc1 L_aux_2")
    A(f"s_cmp_eq_u32 s{S_WAVE}, 3")
    A("s_cbranch_scc1 L_aux_c")
    A(f"s_lshl_b32 s{S_T + 2}, s{S_T}, 11")
    A(f"s_add_u32 s{S_T + 2}, s{S_T + 2}, {CNT - 16 * 2048}")
    A("v_lshlrev_b32 v1, 4, v2")
    A(f"buffer_store_dwordx4 {v(GZ, 4)}, v1, {ws}, s{S_T + 2} offen sc1")
    A(f"buffer_store_dwordx4 {v(GZ, 4)}, v1, {ws}, s{S_T + 2} offen offset:1024 sc1")
    A("s_branch L_aux_2")
    A("L_aux_c:")
    A("L_aux_2:")
    A(f"s_min_u32 s{S_T + 4}, s{S_T}, 35")
    A(f"s_lshl_b32 s{S_T + 4}, s{S_T + 4}, 2")
    A(f"s_add_u32 s{S_T + 4}, s{S_T + 4}, s{S_WAVE}")
    A(f"s_mul_i32 s{S_T + 4}, s{S_T + 4}, 3")
    w2_task(A)
    A(f"s_lshl_b32 s{S_U + 4}, s{S_WAVE}, 12")
    shuf_addr(A, S_U + 4)
    ne = CFG["se"]
    for n in range(ne):
        shuf_dma(A, 16384 * n)
    A(f"s_mov_b32 s{S_T + 2}, {ONES}")
    for p in range(2):
        S, Q = 7 + 2 * p, 6 + 2 * p
        for i in range(9):
            if i % 3 == 0:
                A(f"s_waitcnt vmcnt({15 - 9 * p - i + 4 * ne})")
            for k in range(4):
                r, first = 12 + 36 * p + 4 * i + k, i == 0 and k == 0
                A(f"v_dot2_f32_bf16 v{S}, v{r}, s{S_T + 2}, {'0' if first else 'v%d' % S}")
                A(f"v_dot2_f32_bf16 v{Q}, v{r}, v{r}, {'0' if first else 'v%d' % Q}")
    A(zf_scalar(0))
    A(f"s_lshl_b32 s{S_T + 2}, s{S_T + 1}, 6")
    A(f"s_add_u32 s{S_T + 2}, s{S_T + 2}, {ST}")
    A(f"s_add_u32 s{S_T + 3}, s{S_T + 2}, {160 * 64}")
    for ctl in ("quad_perm:[1,0,3,2]", "quad_perm:[2,3,0,1]", "row_half_mirror"):
        for r in (6, 7, 8, 9):
            A(f"v_add_f32_dpp v{r}, v{r}, v{r} {ctl} row_mask:0xf bank_mask:0xf")
    for r in (6, 7, 8, 9):
        A(f"v_mul_f32 v{r}, {INV576}, v{r}")
    for op in ("v_fma_f32 v{q}, -v{s}, v{s}, v{q}", "v_max_f32 v{q}, 0, v{q}", f"v_add_f32 v{{q}}, {EPS}, v{{q}}",
               "v_rsq_f32 v{q}, v{q}", "v_or_b32 v{q}, 1, v{q}", "v_mul_f32 v{s}, -v{s}, v{q}"):
        for p in range(2):
            A(op.format(q=6 + 2 * p, s=7 + 2 * p))
    stamp(A, 1)
    zf_check(A, "s", 0, 1, 3)
    A(f"buffer_store_dwordx2 v[6:7], v4, {ws}, s{S_T + 2} offen sc1")
    A(f"s_cmp_ge_u32 s{S_T + 1}, 96")
    A("s_cbranch_scc1 L_aux_3")
    A(f"buffer_store_dwordx2 v[8:9], v4, {ws}, s{S_T + 3} offen sc1")
    A("s_branch L_aux_4")
    A("L_aux_3:")
    A(f"s_cmp_eq_u32 s{S_WAVE}, 3")
    A("s_cbranch_scc1 L_aux_4")
    A("v_mov_b32 v1, 1")
    A("s_mov_b64 exec, 1")
    A(f"buffer_atomic_add v1, off, {dbg}, 0 offset:128 sc1")
    A("s_mov_b64 exec, -1")
    A("L_aux_4:")
    stamp(A, 2)
    for n in range(ne, 3):
        shuf_dma(A, 16384 * n)
    A("s_waitcnt vmcnt(0)")
    stamp(A, 3)
    A(f"s_cmp_ge_u32 s{S_T}, 36")
    A("s_cbranch_scc1 L_front_end")
    for n in range(3):
        shuf_read(A, SF + 16 * n, 16384 * n)
        A("s_waitcnt lgkmcnt(0)")
        for c in range(4):
            A(f"s_add_u32 s{S_U + 5}, s{S_U + 3}, {c * 18432 + 1024 * n}")
            A(f"buffer_store_dwordx4 {v(SF + 16 * n + 4 * c, 4)}, v{SV + 1}, {ws}, s{S_U + 5} offen sc1")
    A("s_branch L_front_end")


def aux_path(A):
    pre = 0
    A("s_cmp_ge_u32 s2, 216")
    A("s_cbranch_scc1 L_aux_st")
    srd(A, S_W, S_P + 20, W_BYTES)
    A(f"s_sub_u32 s{S_U}, s2, 144")
    A(f"s_lshl_b32 s{S_U + 2}, s{S_U}, 7")
    A(f"s_mul_i32 s{S_U + 3}, s{S_WAVE}, {32 * 9216}")
    A(f"s_add_u32 s{S_U + 2}, s{S_U + 2}, s{S_U + 3}")
    A(f"s_mov_b32 s{S_U + 1}, 9216")
    A(f"s_mov_b32 s{S_U + 6}, {8 * 9216}")
    A(f"s_mov_b32 s{S_U + 7}, {104 * 9216}")
    A(f"s_lshl_b32 s{S_U + 4}, s{S_WAVE}, 12")
    shuf_addr(A, S_U + 4)
    for n in range(4):
        shuf_dma(A, 16384 * n)
    A(f"s_cmp_ge_u32 s{S_WAVE}, 2")
    A("s_cbranch_scc1 L_aux_a")
    shuf_dma(A, 65536)
    A("L_aux_a:")
    A(f"s_lshl_b32 s{S_T + 4}, s{S_U}, 2")
    A(f"s_add_u32 s{S_T + 4}, s{S_T + 4}, s{S_WAVE}")
    A(f"s_add_u32 s{S_T + 4}, s{S_T + 4}, 432")
    w2_task(A)
    A("v_lshrrev_b32 v1, 3, v2")
    A(f"v_mul_u32_u24 v1, {9216 - 1152}, v1")
    A(f"v_sub_u32 v{SV}, v{SV}, v1")
    shuf_dma(A, 81920)
    A(f"s_mov_b32 s{S_U + 2}, s{S_U + 3}")
    A(f"s_mul_i32 s{S_U + 3}, s{S_U}, 73728")
    A(f"s_lshl_b32 s{S_U + 5}, s{S_WAVE}, 10")
    A(f"s_add_u32 s{S_U + 3}, s{S_U + 3}, s{S_U + 5}")
    A(f"s_add_u32 s{S_U + 3}, s{S_U + 3}, {W1S}")
    for i in range(16):
        A(f"v_mov_b32 v{SF + 64 + i}, 0")
    for i in range(4):
        A(f"v_mov_b32 v{4 + i}, {ONES}")
    for n in range(4):
        if n >= pre:
            A(f"s_waitcnt vmcnt({4 * (4 - n)})")
        shuf_read(A, SF + 16 * n, 16384 * n)
        A("s_waitcnt lgkmcnt(0)")
    for c in range(4):
        A(f"v_add_u32 v{SH + c}, 65536, v{SH + c}")
    A(f"s_cmp_ge_u32 s{S_WAVE}, 2")
    A("s_cbranch_scc1 L_aux_b")
    shuf_read(A, SF + 64, 0)
    A("s_waitcnt lgkmcnt(0)")
    A("L_aux_b:")
    stamp(A, 3)
    for n in range(5):
        for c in range(4):
            A(mf(8 + 4 * c, 4, SF + 16 * n + 4 * c, "0" if n == 0 else 8 + 4 * c))
    A("v_and_b32 v1, 15, v2")
    A("v_lshlrev_b32 v1, 4, v1")
    A(f"v_add_u32 v1, {RED}, v1")
    A(f"s_lshl_b32 s{S_U + 5}, s{S_WAVE}, 8")
    A(f"v_add_u32 v3, s{S_U + 5}, v1")
    for c in range(4):
        A(f"v_mov_b32 v{24 + c}, v{8 + 4 * c}")
    A("ds_write_b128 v3, v[24:27]")
    A(f"s_mov_b32 s{S_U + 6}, 0x00003f80")
    A(f"s_mov_b32 s{S_U + 7}, 0x3f800000")
    A("s_waitcnt lgkmcnt(0)")
    A("s_barrier")
    for w in range(4):
        A(f"ds_read_b128 {v(8 + 4 * w, 4)}, v1 offset:{256 * w}")
    A("s_waitcnt lgkmcnt(0)")
    for w in range(1, 4):
        for h in range(2):
            A(f"v_pk_add_f32 {v(8 + 2 * h, 2)}, {v(8 + 2 * h, 2)}, {v(8 + 4 * w + 2 * h, 2)}")
    for c in range(4):
        A(f"v_mul_f32 v{8 + c}, {INV576 | 0x80000000}, v{8 + c}")
    A("s_waitcnt vmcnt(0)")
    shuf_read(A, 48, 16384)
    A("s_waitcnt lgkmcnt(0)")
    for c in range(4):
        A(f"buffer_store_dwordx4 {v(48 + 4 * c, 4)}, v{SV + 1}, {ws}, s{S_U + 2} offen sc1")
        A(f"s_add_u32 s{S_U + 2}, s{S_U + 2}, 18432")
    for n in range(5):
        if n == 4:
            A(f"s_cmp_ge_u32 s{S_WAVE}, 2")
            A("s_cbranch_scc1 L_front_end")
        for c in range(4):
            t, f = 32 + 8 * (c & 1), SF + 16 * n + 4 * c
            for e in range(8):
                A(f"v_dot2_f32_bf16 v{t + e}, v{f + (e >> 1)}, s{S_U + 6 + (e & 1)}, v{8 + c}")
            A(f"s_add_u32 s{S_U + 5}, s{S_U + 3}, {c * 18432 + 4096 * n}")
            for k in range(4):
                A(f"v_cvt_pk_bf16_f32 v{f + k}, v{t + 2 * k}, v{t + 2 * k + 1}")
            A(f"buffer_store_dwordx4 {v(f, 4)}, v{SV + 1}, {ws}, s{S_U + 5} offen sc1")
    A("s_branch L_front_end")
    A("L_aux_st:")
    aux_stats(A)


def code_prefetch(A):
    lo = CFG["cpf"] - 1
    A(f"s_sub_u32 s{S_T + 4}, s2, {lo}")
    A(f"s_cmp_ge_u32 s{S_T + 4}, 16")
    A("s_cbranch_scc1 L_cpf")
    A(f"s_getpc_b64 s[{S_T + 2}:{S_T + 3}]")
    A("L_cpf_pc:")
    A(f"s_lshr_b32 s{S_T + 4}, s{S_T + 4}, 3")
    A(f"s_lshl_b32 s{S_T + 4}, s{S_T + 4}, 15")
    A(f"v_lshl_add_u32 v96, v0, 7, s{S_T + 4}")
    A("v_min_u32 v96, L_code_end-L_cpf_pc-4, v96")
    A(f"v_add_co_u32 v96, vcc, s{S_T + 2}, v96")
    A(f"v_mov_b32 v97, s{S_T + 3}")
    A("v_addc_co_u32 v97, vcc, 0, v97, vcc")
    A("global_load_dword v98, v[96:97], off")
    A("L_cpf:")


def front(A, name):
    del SLOW[:]
    kernel_head(A, name)
    A("L_code_begin:")
    A("s_cmp_ge_u32 s2, 256")
    A("s_cbranch_scc1 L_exit")
    stamp(A, 0)
    prof_clear(A)
    A(f"s_load_dwordx16 s[{S_P}:{S_P + 15}], s[0:1], 0")
    A(f"s_load_dwordx8 s[{S_P + 16}:{S_P + 23}], s[0:1], 64")
    A(f"s_load_dwordx4 s[{S_P + 24}:{S_P + 27}], s[0:1], 96")
    A(f"s_load_dwordx2 s[{S_P + 28}:{S_P + 29}], s[0:1], 112")
    if CFG["cpf"]:
        code_prefetch(A)
    A("v_lshrrev_b32 v1, 6, v0")
    A(f"v_readfirstlane_b32 s{S_WAVE}, v1")
    A("v_and_b32 v2, 63, v0")
    for i in range(4):
        A(f"v_mov_b32 v{GZ + i}, 0")
    A(f"s_mov_b32 s{S_SP}, 200000")
    A(f"s_and_b32 s{S_CW}, s2, 7")
    A(f"s_mul_i32 s{S_CW}, s{S_CW}, 18")
    A(f"s_lshr_b32 s{S_T}, s2, 3")
    A(f"s_add_u32 s{S_CW}, s{S_CW}, s{S_T}")
    A(f"s_lshl_b32 s{S_CH}, s{S_CW}, 2")
    A(f"s_add_u32 s{S_CH}, s{S_CH}, s{S_WAVE}")
    A(f"s_lshl_b32 s{S_U + 8}, s{S_CW}, 3")
    A(f"s_add_u32 s{S_U + 9}, s{S_U + 8}, 4608")
    A(f"v_mul_u32_u24 v{GA}, 9216, v0")
    A(f"v_lshlrev_b32 v{GA + 1}, 6, v0")
    A(f"v_add_u32 v{GA + 1}, {ST}, v{GA + 1}")
    A("s_waitcnt lgkmcnt(0)")
    srd(A, S_X, S_P, X_BYTES)
    srd(A, S_WS, S_P + 28, WS_END)
    srd(A, S_DBG, S_P + 26, 256)
    A("s_cmp_ge_u32 s2, 144")
    A("s_cbranch_scc1 L_aux")
    A(f"s_load_dwordx2 s[82:83], s[{S_P + 16}:{S_P + 17}], s{S_U + 8}")
    kgen_issue(A)
    A("s_barrier")
    w2c = 1
    if CFG["pf"]:
        A(f"s_lshr_b32 s{S_T}, s2, 3")
        A(f"s_mul_i32 s{S_T}, s{S_T}, {128 * 1152}")
        A(f"s_and_b32 s{S_T + 1}, s2, 7")
        A(f"s_mul_i32 s{S_T + 1}, s{S_T + 1}, 144")
        A(f"s_add_u32 s{S_T}, s{S_T}, s{S_T + 1}")
        A("v_lshrrev_b32 v1, 1, v0")
        A("v_mul_u32_u24 v1, 1152, v1")
        A("v_and_b32 v3, 1, v0")
        A("v_mul_u32_u24 v3, 140, v3")
        A(f"v_add3_u32 v1, v1, v3, s{S_T}")
        A(f"buffer_load_dword v{GS}, v1, {xs}, 0 offen")
    conv_w2_issue(A)
    g = [gather(i) for i in range(8)]
    A.ext(g[:CFG["g0"]])
    del g[:CFG["g0"]]
    conv_setup(A, g)
    if g:
        A(g.pop(0))
    stamp(A, 1)
    A(f"s_waitcnt vmcnt({12 - len(g) + CFG['pf']})")
    kgen_valu(A, g)
    stamp(A, 2)
    kgen_contract(A)
    A("s_waitcnt vmcnt(4)")
    if w2c:
        shuf_read(A, AW, 0, a)
    A.ext(normalise1())
    A("s_waitcnt vmcnt(0)")
    stamp(A, 3)
    chk = [f"v_min_u32 v1, v{GS}, v{GS + 2}", f"v_min3_u32 v1, v1, v{GS + 4}, v{GS + 6}",
           f"v_min3_u32 v1, v1, v{GS + 8}, v{GS + 10}", f"v_min3_u32 v1, v1, v{GS + 12}, v{GS + 14}",
           "v_cmp_eq_u32 vcc, 0, v1"]
    A.ext(chk)
    A("s_cbranch_vccnz L_st_slow")
    A("L_st_back:")
    SLOW.append(["L_st_slow:", f"s_cmp_eq_u32 s{S_SP}, 0", "s_cbranch_scc1 L_st_back", f"s_sub_u32 s{S_SP}, s{S_SP}, 1",
                 "s_sleep 4"] + STLOAD + ["s_waitcnt vmcnt(0)"] + chk + ["s_cbranch_vccnz L_st_slow", "s_branch L_st_back"])
    normalise2(A)
    A("s_waitcnt lgkmcnt(0)")
    A("s_barrier")
    stamp(A, 4)
    conv_main(A)
    stamp(A, 6)
    A("L_front_end:")
    A(zf_scalar(128))


def out_of_line():
    B = Asm()
    B("L_aux:")
    aux_path(B)
    for code in SLOW:
        B.ext(code)
    return B.lines
```

```python
from common import *

HB = 73728
STB = 147456
K3_LDS = STB + 512

S_WAVE, S_J, S_TT = 3, 4, 5
S_WS, S_OUT = 8, 12
S_CUR, S_NXT, S_W2B, S_N, S_LP = 16, 17, 18, 19, 20
S_PO, S_FO, S_GL, S_GC, S_RO = 21, 22, 23, 24, 25
S_G8F, S_G8D, S_G8O, S_OO = 26, 27, 28, 29
S_FAC, S_SP = 30, 31
S_T = 72
S_MA, S_MC, S_MD = 74, 76, 78

VW = 4
VF0 = 9
HA = 10
HW = 14
HR = 18
RS = 20
VONE, VFL, VG8, VO = 24, 25, 26, 27
TP = 28
ACC, FIN = 32, 48
PK = 64
LAND = 72
SUM = 80
SQ, SM = 96, 100
UT = 104
ACTV = 108
WR = 140
VPO, VRI, VFI = 212, 213, 214
V4, VG8O = 215, 216
UX = 220
LND2 = 236
NV = 244

STEPPROF = False
CFG = dict(LA1=18, LA2=18, ep=8, epr=2, fs=72 + 16, fl=72 + 68, ck=144 + 60, ac=216 + 52, hs=13, bar1=1, bar2=1, nsent=2, t8a=20, t8b=40, t8c=28, t8d=70, ost=0, LA3=18)


def act(m, ks, n=4, o=0):
    i = 4 * ks + m
    return a(4 * i + o, n) if i < 64 else v(ACTV + 4 * (i - 64) + o, n)


def ffn(A, p_out, cleared, late_read, late_store):
    cfg = CFG
    OST = ["", " sc1", " nt", " sc0 sc1", " sc1 nt"][cfg["ost"]]
    ws, so = f"s[{S_WS}:{S_WS + 3}]", f"s[{S_OUT}:{S_OUT + 3}]"
    A(f"s_lshl_b32 s{S_J}, s2, 1")
    A(f"s_bfe_u32 s{S_T}, s2, 0x10003")
    A(f"s_or_b32 s{S_J}, s{S_J}, s{S_T}")
    A(f"s_and_b32 s{S_J}, s{S_J}, 7")
    A(f"s_lshr_b32 s{S_TT}, s2, 4")
    A(f"s_and_b32 s{S_T}, s2, 4")
    A(f"s_lshl_b32 s{S_T}, s{S_T}, 2")
    A(f"s_or_b32 s{S_TT}, s{S_TT}, s{S_T}")
    A(f"v_lshlrev_b32 v{VW}, 4, v2")
    for i in range(1, 5):
        A(f"v_add_u32 v{VW + i}, {4096 * i}, v{VW}")
    A(f"s_mul_i32 s{S_T}, s{S_TT}, 73728")
    A(f"s_lshl_b32 s{S_T + 1}, s{S_WAVE}, 10")
    A(f"s_add_u32 s{S_T}, s{S_T}, s{S_T + 1}")
    A(f"s_mul_i32 s{S_NXT}, s{S_J}, {9 * 73728}")
    A(f"s_mul_i32 s{S_T + 2}, s{S_WAVE}, 18432")
    A(f"s_add_u32 s{S_NXT}, s{S_NXT}, s{S_T + 2}")
    A(f"s_add_u32 s{S_W2B}, s{S_NXT}, {W2S}")
    A(f"s_add_u32 s{S_NXT}, s{S_NXT}, {W1S}")
    A(f"s_add_u32 s{S_CUR}, s{S_T}, {HT}")
    vm, lg = Cnt("vmcnt", 63), Cnt("lgkmcnt", 15)
    nx = [0]

    def wload(cur_step):
        f = nx[0]
        nx[0] += 1
        st, ks = divmod(f, 18)
        vm.issue(("w", f))
        sr = S_CUR if st == cur_step else S_NXT
        return f"buffer_load_dwordx4 {v(WR + 4 * ks, 4)}, v{VW + ks // 4}, {ws}, s{sr} offen offset:{1024 * (ks % 4)} sc1"
    setup = Asm()
    B = setup
    srd(B, S_OUT, p_out, X_BYTES)
    B(f"v_lshrrev_b32 v{TP}, 2, v2")
    B(f"v_bfe_u32 v{TP + 1}, v2, 3, 2")
    B(f"v_xor_b32 v{TP + 1}, s{S_WAVE}, v{TP + 1}")
    B(f"v_and_b32 v{TP + 2}, 3, v2")
    B(f"v_lshlrev_b32 v{TP + 2}, 3, v{TP + 2}")
    B(f"v_lshl_add_u32 v{TP + 2}, v{TP}, 7, v{TP + 2}")
    B(f"v_lshl_add_u32 v{HA}, v{TP + 1}, 5, v{TP + 2}")
    for m in range(1, 4):
        B(f"v_xor_b32 v{HA + m}, {32 * m}, v{HA}")
    B(f"v_add_u32 v{HR}, {HB}, v{VW}")
    B(f"v_add_u32 v{HR + 1}, {HB + 36864}, v{VW}")
    B(f"s_lshr_b32 s{S_T}, s{S_WAVE}, 1")
    B(f"s_lshl_b32 s{S_T}, s{S_T}, 12")
    B(f"s_and_b32 s{S_T + 2}, s{S_WAVE}, 1")
    B(f"s_lshl_b32 s{S_T + 2}, s{S_T + 2}, 3")
    B(f"s_add_u32 s{S_T}, s{S_T}, s{S_T + 2}")
    for m in range(4):
        B(f"s_xor_b32 s{S_T + 2}, s{S_T + 1}, {1024 * m}")
        B(f"s_add_u32 s{S_T + 2}, s{S_T + 2}, s{S_T}")
        B(f"v_add_u32 v{HW + m}, s{S_T + 2}, v{HR}")
    B(f"s_mul_i32 s{S_T}, s{S_TT}, {9 * 65536}")
    B(f"s_add_u32 s{S_T}, s{S_T}, {PP}")
    B(f"s_lshl_b32 s{S_G8D}, s{S_J}, 10")
    B(f"s_add_u32 s{S_G8D}, s{S_G8D}, s{S_T}")
    B(f"s_lshl_b32 s{S_T + 2}, s{S_WAVE}, 8")
    B(f"s_add_u32 s{S_G8D}, s{S_G8D}, s{S_T + 2}")
    B(f"s_lshl_b32 s{S_T + 2}, s{S_WAVE}, 11")
    B(f"s_add_u32 s{S_T}, s{S_T}, s{S_T + 2}")
    B(f"s_lshl_b32 s{S_RO}, s{S_J}, 13")
    B(f"s_add_u32 s{S_T + 2}, s{S_T}, s{S_RO}")
    B(f"v_add_u32 v{VPO}, s{S_T + 2}, v{VW}")
    B(f"s_lshl_b32 s{S_PO}, s{S_J}, 16")
    B(f"s_add_u32 s{S_T + 2}, s{S_T}, s{S_PO}")
    B(f"v_add_u32 v{VRI}, s{S_T + 2}, v{VW}")
    B(f"s_lshl_b32 s{S_T}, s{S_TT}, 10")
    B(f"s_add_u32 s{S_T}, s{S_T}, {FL}")
    B(f"s_lshr_b32 s{S_T + 2}, s{S_J}, 1")
    B(f"s_lshl_b32 s{S_T + 2}, s{S_T + 2}, 2")
    B(f"s_add_u32 s{S_G8F}, s{S_T}, s{S_T + 2}")
    B(f"s_lshl_b32 s{S_T + 2}, s{S_WAVE}, 2")
    B(f"s_add_u32 s{S_T}, s{S_T}, s{S_T + 2}")
    B(f"s_lshl_b32 s{S_FO}, s{S_J}, 7")
    B(f"s_add_u32 s{S_T + 2}, s{S_T}, s{S_FO}")
    B(f"v_min_u32 v{VF0}, 1, v2")
    B(f"v_lshl_add_u32 v{VFI}, v{VF0}, 31, s{S_T + 2}")
    B(f"s_lshl_b32 s{S_GL}, s{S_J}, 4")
    B(f"s_add_u32 s{S_T + 2}, s{S_T}, s{S_GL}")
    B(f"v_lshl_add_u32 v{VF0}, v{VF0}, 31, s{S_T + 2}")
    B(f"v_lshlrev_b32 v{V4}, 2, v2")
    B(f"v_bfe_u32 v{VG8O}, v2, 1, 1")
    B(f"v_lshl_add_u32 v{VG8O}, v{VG8O}, 4, v{TP}")
    B(f"v_mul_u32_u24 v{VG8O}, 1152, v{VG8O}")
    B(f"v_and_b32 v{TP + 3}, 1, v2")
    B(f"v_lshl_add_u32 v{VG8O}, v{TP + 3}, 2, v{VG8O}")
    B(f"s_mul_i32 s{S_OO}, s{S_TT}, 73728")
    B(f"s_and_b32 s{S_T}, s{S_J}, 1")
    B(f"s_mul_i32 s{S_T}, s{S_T}, 36864")
    B(f"s_add_u32 s{S_G8O}, s{S_OO}, s{S_T}")
    B(f"s_lshr_b32 s{S_T}, s{S_J}, 1")
    B(f"s_lshl_b32 s{S_T}, s{S_T}, 2")
    B(f"s_add_u32 s{S_T}, s{S_T}, s{S_WAVE}")
    B(f"s_lshl_b32 s{S_T}, s{S_T}, 3")
    B(f"s_add_u32 s{S_G8O}, s{S_G8O}, s{S_T}")
    B(f"s_lshl_b32 s{S_T}, s{S_J}, 7")
    B(f"s_add_u32 s{S_OO}, s{S_OO}, s{S_T}")
    B(f"s_lshl_b32 s{S_T}, s{S_WAVE}, 5")
    B(f"s_add_u32 s{S_OO}, s{S_OO}, s{S_T}")
    B(f"v_and_b32 v{VO}, 15, v2")
    B(f"v_mul_u32_u24 v{VO}, 1152, v{VO}")
    B(f"v_lshrrev_b32 v{TP + 3}, 4, v2")
    B(f"v_lshl_add_u32 v{VO}, v{TP + 3}, 3, v{VO}")
    B(f"v_lshrrev_b32 v{TP + 3}, 3, v2")
    B(f"v_min_u32 v{TP + 3}, 1, v{TP + 3}")
    B(f"v_mul_u32_u24 v{VG8}, 144, v2")
    B(f"v_lshl_add_u32 v{VG8}, v{TP + 3}, 31, v{VG8}")
    B(f"v_mov_b32 v{VONE}, 1")
    B(f"s_cmp_eq_u32 s{S_J}, 0")
    B(f"s_cselect_b32 s{S_FAC}, 1.0, 0")
    for i in range(4):
        B(f"v_mov_b32 v{PK + i}, {ONES}")
    B(f"s_mov_b32 s{S_MA}, 0xaaaaaaaa")
    B(f"s_mov_b32 s{S_MA + 1}, 0xaaaaaaaa")
    B(f"s_mov_b32 s{S_MC}, 0xcccccccc")
    B(f"s_mov_b32 s{S_MC + 1}, 0xcccccccc")
    B(f"s_mov_b32 s{S_MD}, 0x00f0000f")
    B(f"s_mov_b32 s{S_MD + 1}, 0xf0000f00")
    A.ext(setup.lines)
    A(f"s_mov_b32 s{S_SP}, 400000")
    A(f"s_and_b32 s{S_T}, s2, 7")
    A(f"s_lshl_b32 s{S_T}, s{S_T}, 7")
    A(f"s_add_u32 s{S_T}, s{S_T}, {CNT}")
    A(f"v_lshl_add_u32 v{UX}, v2, 10, s{S_T}")
    A(f"s_add_u32 s{S_T}, s{S_T}, {CN3 - CNT}")
    A(f"v_min_u32 v{UX + 2}, 1, v0")
    A(f"v_lshl_add_u32 v{UX + 2}, v{UX + 2}, 31, s{S_T}")
    A(f"v_and_b32 v{UX + 3}, 7, v2")
    A(f"v_lshlrev_b32 v{UX + 3}, 7, v{UX + 3}")
    A(f"v_add_u32 v{UX + 3}, {CN3}, v{UX + 3}")
    A(f"s_bfe_u32 s{S_T}, s2, 0x40003")
    A(f"s_lshl_b32 s{S_T}, s{S_T}, 10")
    A(f"s_add_u32 s{S_T}, s{S_T}, {CNT}")
    A(f"v_lshl_add_u32 v{UX + 1}, v2, 7, s{S_T}")
    NS = cfg["nsent"]
    for i in range(4):
        A(f"v_mov_b32 v{LAND + i}, -1")

    def fill(B):
        for b in range(8 - NS, 8):
            B(f"s_add_u32 s{S_GC}, s{S_PO}, {65536 * b}")
            B(f"s_and_b32 s{S_GC}, s{S_GC}, 0x7ffff")
            for h in range(2):
                B(f"buffer_store_dwordx4 {v(LAND, 4)}, v{VPO}, {ws}, s{S_GC} offen offset:{1024 * h} sc1")
    A("s_waitcnt vmcnt(4)")
    stamp(A, 1, 1)
    A("s_barrier")
    A(f"s_cmp_lg_u32 s{S_WAVE}, 0")
    A("s_cbranch_scc1 L_s2_other")
    cleared(A, VFL, S_SP)
    poll2 = [f"v_mov_b32 v{VFL}, 0", f"buffer_atomic_add v{VFL}, v{UX + 1}, {ws}, 0 offen sc0 sc1"]
    A("s_mov_b64 exec, 0xffff")
    A(f"buffer_atomic_add v{VONE}, v{UX}, {ws}, 0 offen sc1")
    A("s_mov_b64 exec, 0xff")
    A.ext(poll2)
    A("s_mov_b64 exec, -1")
    A("s_waitcnt vmcnt(2)")
    late_read(A)
    A("s_mov_b64 exec, 0xff")
    A("L_s2_poll:")
    A("s_waitcnt vmcnt(0)")
    A(f"v_cmp_ne_u32 vcc, 32, v{VFL}")
    A("s_cbranch_vccz L_s2_ok")
    A.ext(poll2)
    A(f"s_sub_u32 s{S_SP}, s{S_SP}, 1")
    A(f"s_cmp_lg_u32 s{S_SP}, 0")
    A("s_cbranch_scc1 L_s2_poll")
    A("L_s2_ok:")
    A("s_mov_b64 exec, -1")
    A("s_waitcnt lgkmcnt(0)")
    A("s_barrier")
    late_store(A)
    fill(A)
    A("s_branch L_s2_done")
    A("L_s2_other:")
    fill(A)
    A(f"s_waitcnt vmcnt({2 * NS})")
    late_read(A)
    A("s_waitcnt lgkmcnt(0)")
    late_store(A)
    A("s_barrier")
    A("L_s2_done:")
    stamp(A, 2, 1)
    for ks in range(18):
        A(f"s_add_u32 m0, s{S_T + 1}, {4096 * ks}")
        A(f"s_add_u32 s{S_T}, s{S_CUR}, {4096 * ks}")
        A(f"buffer_load_dwordx4 v{VW}, {ws}, s{S_T} offen sc1 lds")
        vm.issue("dma")
    for _ in range(cfg["LA1"] - 2):
        A(wload(-1))
    A.ext(vm.wait("dma"))
    A("s_barrier")
    stamp(A, 3, 1)
    A(f"buffer_atomic_add v{VONE}, v{UX + 2}, {ws}, 0 offen sc1")
    vm.issue()

    def hread(ks):
        out = []
        if ks == 16:
            out += [f"v_add_u32 v{HA + m}, 65536, v{HA + m}" for m in range(4)]
        for m in range(4):
            for h in range(2):
                off = (4096 * ks + 2048 * h) & 0xffff
                out.append(("lg", ("h", ks), f"ds_read_b64_tr_b16 {act(m, ks, 2, 2 * h)}, v{HA + m} offset:{off}"))
        return out

    def Hread(ks):
        r, off = (HR, 4096 * ks) if ks < 9 else (HR + 1, 4096 * (ks - 9))
        return [("lg", ("H", ks), f"ds_read_b128 {act(m, ks)}, v{r} offset:{off + 1024 * m}") for m in range(4)]

    def ep1():
        out = []
        for m in range(4):
            out += [f"v_cvt_pk_bf16_f32 v{PK + 2 * m + h}, v{FIN + 4 * m + 2 * h}, v{FIN + 4 * m + 2 * h + 1}" for h in range(2)]
            out += [f"v_pk_max_i16 v{PK + 2 * m + h}, v{PK + 2 * m + h}, 0" for h in range(2)]
            out.append(("lg", "Hw", f"ds_write_b64 v{HW + m}, {v(PK + 2 * m, 2)}"))
            out.append(f"v_add_u32 v{HW + m}, 8192, v{HW + m}")
        return out

    def hres_read():
        return [("lg", "hres", f"ds_read_b64_tr_b16 {v(LAND + 2 * m, 2)}, v{HA + m}") for m in range(4)]

    def unpack_to_sum():
        out = [("lgw", "hres")]
        for i in range(8):
            out += [f"v_lshlrev_b32 v{SUM + 2 * i}, 16, v{LAND + i}", f"v_and_b32 v{SUM + 2 * i + 1}, 0xffff0000, v{LAND + i}"]
        return out

    def scale_pack(m, add):
        out = []
        for i in range(4):
            r = FIN + 4 * m + i
            out.append(f"v_fma_f32 v{r}, v{r}, v{RS + m}, v{SUM + 4 * m + i}" if add else f"v_mul_f32 v{r}, v{r}, v{RS + m}")
        return out + [f"v_cvt_pk_bf16_f32 v{PK + 2 * m + h}, v{FIN + 4 * m + 2 * h}, v{FIN + 4 * m + 2 * h + 1}" for h in range(2)]

    def rot(sr, delta, mask):
        op = "s_add_u32" if delta > 0 else "s_sub_u32"
        return [f"{op} s{sr}, s{sr}, {abs(delta)}", f"s_and_b32 s{sr}, s{sr}, {mask}"]

    def ep2(b):
        out = [f"s_mov_b32 s{S_T + 2}, {8 * 65536}"] if b == 0 else rot(S_PO, 65536, 0x7ffff)
        sr = S_T + 2 if b == 0 else S_PO
        for m in range(4):
            out += scale_pack(m, b == 0)
            if m & 1:
                out.append(("vm", ("pst", b), f"buffer_store_dwordx4 {v(PK + 4 * (m >> 1), 4)}, v{VPO}, {ws}, s{sr} offen offset:{1024 * (m >> 1)} sc1"))
        return out

    def flag_st(b):
        return ([] if b == 0 else rot(S_FO, 128, 0x3ff)) + \
            [("vmw", ("pst", b)), ("vm", None, f"buffer_atomic_add v{VONE}, v{VF0}, {ws}, s{S_FO} offen sc1")]
    slow = []

    def poll(b):
        ad = f"v{VG8}, {ws}, s{S_G8F}" if b == 0 else f"v{VFI}, {ws}, s{S_GL}"
        return f"buffer_atomic_add v{VFL}, {ad} offen sc0 sc1"

    def flag_ld(b):
        return ([] if b == 0 else rot(S_GL, -16, 0x7f)) + [f"v_mov_b32 v{VFL}, 0", ("vm", ("fl", b), poll(b))]

    def check(b, tag):
        test = [f"v_cmp_ne_u32 vcc, 1, v{VFL}", f"s_and_b32 s{S_GC}, vcc_lo, {0xff if b == 0 else 1}"]
        code = [f"L_k3_slow{tag}:", f"s_cmp_eq_u32 s{S_SP}, 0", f"s_cbranch_scc1 L_k3_back{tag}", f"s_sub_u32 s{S_SP}, s{S_SP}, 1",
                f"v_mov_b32 v{VFL}, 0", poll(b), "s_waitcnt vmcnt(0)"] + test + \
               [f"s_cbranch_scc1 L_k3_slow{tag}", f"s_branch L_k3_back{tag}"]
        slow.append(code)
        return [("vmw", ("fl", b)), test[0], ("seq", [test[1], f"s_cbranch_scc1 L_k3_slow{tag}", f"L_k3_back{tag}:"])]

    def data_ld(b, dst=LAND):
        if b == 0:
            out = []
            for sj in range(8):
                out += [f"s_add_u32 s{S_T + 3}, s{S_G8D}, {8 * 65536 + sj * 8192}",
                        ("vm", ("dat", b), f"buffer_load_dword v{dst + sj}, v{V4}, {ws}, s{S_T + 3} offen sc1")]
            return out
        return rot(S_RO, -8192, 0xffff) + \
            [("vm", ("dat", b), f"buffer_load_dwordx4 {v(dst + 4 * h, 4)}, v{VRI}, {ws}, s{S_RO} offen offset:{1024 * h} sc1") for h in range(2)]

    def accum(b, src=LAND):
        out = [("vmw", ("dat", b))]
        for i in range(8):
            out += [f"v_lshlrev_b32 v{UX + 2 * i}, 16, v{src + i}", f"v_and_b32 v{UX + 2 * i + 1}, 0xffff0000, v{src + i}"]
        if b == 0:
            for w in (8, 4, 2):
                out += [f"v_add_f32 v{UX + i}, v{UX + i}, v{UX + w + i}" for i in range(w)]
            return out + [f"v_cvt_pk_bf16_f32 v{SQ}, v{UX}, v{UX + 1}",
                          ("vm", None, f"buffer_store_dword v{SQ}, v{VG8O}, {so}, s{S_G8O} offen offset:1024{OST}")]
        return out + [f"v_add_f32 v{SUM + i}, v{SUM + i}, v{UX + i}" for i in range(16)]

    def stats_fin():
        return [f"v_cndmask_b32 v{SQ}, v{SQ}, v{SQ + 1}, s[{S_MA}:{S_MA + 1}]",
                f"v_cndmask_b32 v{SQ + 2}, v{SQ + 2}, v{SQ + 3}, s[{S_MA}:{S_MA + 1}]",
                f"v_mul_f32 v{SM}, {INV576}, v{SM}",
                f"v_cndmask_b32 v{SQ}, v{SQ}, v{SQ + 2}, s[{S_MC}:{S_MC + 1}]",
                f"v_and_b32 v{TP}, 15, v2", f"v_mul_f32 v{SQ}, {INV576}, v{SQ}",
                f"v_lshlrev_b32 v{TP}, 2, v{TP}", f"v_fma_f32 v{SQ}, -v{SM}, v{SM}, v{SQ}",
                f"v_add_u32 v{TP}, {STB}, v{TP}", f"v_max_f32 v{SQ}, 0, v{SQ}",
                f"s_lshl_b32 s{S_T}, s{S_WAVE}, 6", f"v_add_f32 v{SQ}, {EPS}, v{SQ}",
                f"v_add_u32 v{TP + 1}, s{S_T}, v{TP}", f"v_rsq_f32 v{SQ}, v{SQ}",
                f"v_add_u32 v{TP + 2}, 256, v{TP + 1}",
                f"v_cndmask_b32 v{TP + 1}, v{TP + 2}, v{TP + 1}, s[{S_MD}:{S_MD + 1}]",
                ("lg", "st", f"ds_write_b32 v{TP + 1}, v{SQ}")]

    def put(out, it):
        if isinstance(it, str):
            out.append(it)
        elif it[0] == "lg":
            lg.issue(it[1])
            out.append(it[2])
        elif it[0] == "vm":
            vm.issue(it[1])
            out.append(it[2])
        elif it[0] == "lgw":
            out.extend(lg.wait(it[1]))
        elif it[0] == "vmw":
            out.extend(vm.wait(it[1]))
        elif it[0] == "seq":
            out.extend(it[1])
        elif it[0] == "bar":
            out.extend(lg.wait(it[1]) if it[1] else [])
            out.append("s_barrier")

    def step(n, la, head=(), streams=(), pre=None, gram=False, prei=None):
        out, pre = [], pre or {}
        sts = [[st, rate, list(items)] for st, rate, items in streams]
        if STEPPROF:
            out.append(f"s_memtime s[{32 + 2 * n}:{33 + 2 * n}]")
        out.append(f"s_mov_b32 s{S_CUR}, s{S_NXT}")
        if (cfg["bar1"] and 1 <= n <= 7) or (cfg["bar2"] and n >= 10):
            out.append("s_barrier")
        for it in head:
            put(out, it)
        seen, left = set(), {m: 18 for m in range(4)}
        for p in range(9):
            f0 = 18 * n + 2 * p
            for it in pre.get(p, ()):
                put(out, it)
            out.extend(vm.wait(("w", f0 + 1), force=True))
            ms = range(4) if p % 2 == 0 else range(3, -1, -1)
            seq = [(2 * p + (d if i % 2 == 0 else 1 - d), m) for i, m in enumerate(ms) for d in range(2)]
            for i, (ks, m) in enumerate(seq):
                for it in (prei or {}).get(8 * p + i, ()):
                    put(out, it)
                left[m] -= 1
                d = FIN if left[m] == 0 else ACC
                c = v(ACC + 4 * m, 4) if m in seen else "0"
                seen.add(m)
                out.append(f"v_mfma_f32_16x16x32_bf16 {v(d + 4 * m, 4)}, {v(WR + 4 * ks, 4)}, {act(m, ks)}, {c}")
                if i in (1, 5) and nx[0] < min(324, f0 + la - (1 if i == 1 else 0)):
                    out.append(wload(n))
                idx = 8 * p + i
                for stt in sts:
                    if idx >= stt[0]:
                        k = 0
                        while k < stt[1] and stt[2]:
                            it = stt[2].pop(0)
                            put(out, it)
                            if isinstance(it, str) or it[0] not in ("lgw", "vmw"):
                                k += 1
            if gram:
                for ks in (2 * p, 2 * p + 1):
                    out.append(f"v_mfma_f32_16x16x32_bf16 {v(SQ, 4)}, {act(0, ks)}, {act(0, ks)}, {'0' if ks == 0 else v(SQ, 4)}")
                for ks in (2 * p, 2 * p + 1):
                    out.append(f"v_mfma_f32_16x16x32_bf16 {v(SM, 4)}, {v(PK, 4)}, {act(0, ks)}, {'0' if ks == 0 else v(SM, 4)}")
        for stt in sts:
            assert not stt[2], (n, stt)
        return out

    LA1, LA2, EP = cfg["LA1"], cfg["LA2"], cfg["ep"]
    nextw1 = [f"s_add_u32 s{S_NXT}, s{S_NXT}, 73728"]
    nextw2 = [f"s_add_u32 s{S_N}, s{S_N}, 1", f"s_and_b32 s{S_N}, s{S_N}, 7", f"s_mul_i32 s{S_T}, s{S_N}, 73728",
              f"s_add_u32 s{S_NXT}, s{S_W2B}, s{S_T}"]
    steps, pro = [], []
    groups = []
    for p in range(9):
        for m in (range(4) if p % 2 == 0 else range(3, -1, -1)):
            g = []
            if p == 8:
                g.append(f"v_add_u32 v{HA + m}, 65536, v{HA + m}")
            for ks in (2 * p, 2 * p + 1):
                for h in range(2):
                    off = (4096 * ks + 2048 * h) & 0xffff
                    g.append(("lg", ("h", len(groups)), f"ds_read_b64_tr_b16 {act(m, ks, 2, 2 * h)}, v{HA + m} offset:{off}"))
            groups.append(g)
    for g in groups[:4]:
        for it in g:
            put(pro, it)
    A.ext(pro)
    steps.append(step(0, LA1, head=nextw1, gram=True,
                      streams=[(2 * q, 3, groups[q + 4]) for q in range(32)],
                      prei={2 * q: [("lgw", ("h", q))] for q in range(36)}))
    steps.append(step(1, LA1, head=nextw1, streams=[(EP, 1, ep1() + stats_fin())]))
    for n in range(2, 7):
        steps.append(step(n, LA1, head=nextw1, streams=[(EP, 1, ep1())]))
    ld3 = f"buffer_load_dword v{VFL}, v{UX + 3}, {ws}, 0 offen sc1"
    slow.append(["L_k3_slow3:", f"s_cmp_eq_u32 s{S_SP}, 0", "s_cbranch_scc1 L_k3_back3", f"s_sub_u32 s{S_SP}, s{S_SP}, 1",
                 "s_sleep 8", ld3, "s_waitcnt vmcnt(0)", f"v_cmp_ne_u32 vcc, 32, v{VFL}",
                 "s_cbranch_vccnz L_k3_slow3", "s_branch L_k3_back3"])
    chk3 = [("vmw", "c3"), f"v_cmp_ne_u32 vcc, 32, v{VFL}", ("seq", ["s_cbranch_vccnz L_k3_slow3", "L_k3_back3:"])]
    steps.append(step(7, LA1, head=nextw1 + [("vm", "c3", ld3)], streams=[(EP, 1, ep1()), (68, 1, chk3)]))
    hsl = {8: {}, 9: {}}
    for q in range(8):
        for k, it in enumerate(Hread(2 * q) + Hread(2 * q + 1)):
            g = 8 + cfg["hs"] * q + (k * cfg["hs"]) // 8
            hsl[8 + g // 72].setdefault(g % 72, []).append(it)
    hd = [f"s_add_u32 s{S_NXT}, s{S_W2B}, {8 * 73728}", f"s_mov_b32 s{S_N}, s{S_J}", f"s_mov_b32 s{S_SP}, 400000", ("bar", "Hw")]
    rsr = [("lg", "rs", f"ds_read_b32 v{RS + m}, v{TP} offset:{64 * m}") for m in range(4)]
    steps.append(step(8, LA1, head=hd, pre={7: [("bar", "Hw")]}, prei=hsl[8], streams=[(0, 1, rsr), (EP, 1, ep1())]))
    fixa = [f"s_lshl_b32 s{S_T + 1}, s{S_WAVE}, 5"] + [f"v_xor_b32 v{HA + m}, s{S_T + 1}, v{HA + m}" for m in range(4)]
    fixa += [f"s_lshl_b32 s{S_T + 1}, s{S_WAVE}, 11"] + [f"v_add_u32 v{HA + m}, s{S_T + 1}, v{HA + m}" for m in range(4)]
    scale = [f"v_mul_f32 v{SUM + i}, s{S_FAC}, v{SUM + i}" for i in range(16)]
    pre = {p: [("lgw", ("H", 2 * p + 1))] for p in range(9)}
    pre[5] = pre[5] + [("bar", "Hw")]
    own = [f"s_lshl_b32 s{S_T + 1}, s{S_J}, 13", f"s_sub_u32 s{S_T + 1}, s{S_T + 1}, 65536"]
    own += [f"v_add_u32 v{HA + m}, s{S_T + 1}, v{HA + m}" for m in range(4)]
    assert cfg["fl"] + 2 <= cfg["ck"] <= cfg["fl"] + 70 and cfg["ck"] + 10 <= cfg["ac"] <= cfg["ck"] + 64
    ev = {n: [] for n in range(9)}
    late = []
    for b in range(8 - NS):
        for kind in ("fs", "fl", "ck", "ac"):
            g = 72 * (b + 1) + cfg[kind]
            (ev[g // 72] if g // 72 <= 7 else late).append((g % 72 if g // 72 <= 7 else g, kind, b))

    def ev_items(kind, b, tag, dst=LAND):
        return {"fs": lambda: flag_st(b), "fl": lambda: flag_ld(b), "ck": lambda: check(b, tag) + data_ld(b, dst),
                "ac": lambda: accum(b, dst)}[kind]()
    for n in range(8):
        st = []
        if n == 0:
            st = [(0, 2, fixa + hres_read()), (EP, 1, ep1()), (40, 1, Hread(16) + Hread(17)), (48, 2, unpack_to_sum() + scale)]
        else:
            st = [(EP, cfg["epr"], ep2(n - 1) + (unpack_to_sum() if n == 1 else []))]
            if n == 1:
                st.insert(0, (0, 2, own + hres_read()))
        for idx, kind, b in sorted(ev[n]):
            st.append((idx, 2, ev_items(kind, b, "@")))
        body = step(9 + n, LA2 if n < 7 else cfg['LA3'], head=(stamp_item(4) if n == 0 else []) + nextw2, streams=st,
                    pre=pre if n == 0 else None, prei=hsl[9] if n == 0 else None)
        steps.append(body)
    late.sort()
    pend = {k: [b for _, kk, b in late if kk == k] for k in ("fs", "fl", "ck", "ac")}
    assert not pend["fs"] and not pend["fl"] and len(pend["ck"]) <= 1, pend
    land = {b: LAND for b in pend["ac"]}
    st = [(6, 2, ep2(7))]
    for b in pend["ck"]:
        land[b] = LND2
        st.append((cfg["t8a"], 2, ev_items("ck", b, f"t{b}", LND2)))
    acc8 = [it for b in pend["ac"] for it in accum(b, land[b])]
    st.append((cfg["t8c"], 2, acc8))

    def sent_ld(b, dst):
        return rot(S_RO, -8192, 0xffff) + [f"s_mov_b32 s{S_T + b - 4}, s{S_RO}"] + \
            [("vm", ("dat", b), f"buffer_load_dwordx4 {v(dst + 4 * h, 4)}, v{VRI}, {ws}, s{S_RO} offen offset:{1024 * h} sc1") for h in range(2)]

    def sent_chk(b, dst):
        test = [f"v_max3_u32 v{UT}, v{dst}, v{dst + 1}, v{dst + 2}", f"v_max3_u32 v{UT + 1}, v{dst + 3}, v{dst + 4}, v{dst + 5}",
                f"v_max3_u32 v{UT}, v{UT}, v{dst + 6}, v{dst + 7}", f"v_max_u32 v{UT}, v{UT}, v{UT + 1}", f"v_cmp_eq_u32 vcc, -1, v{UT}"]
        slow.append([f"L_k3_slowq{b}:", f"s_cmp_eq_u32 s{S_SP}, 0", f"s_cbranch_scc1 L_k3_backq{b}", f"s_sub_u32 s{S_SP}, s{S_SP}, 1"] +
                    [f"buffer_load_dwordx4 {v(dst + 4 * h, 4)}, v{VRI}, {ws}, s{S_T + b - 4} offen offset:{1024 * h} sc1" for h in range(2)] +
                    ["s_waitcnt vmcnt(0)"] + test + [f"s_cbranch_vccnz L_k3_slowq{b}", f"s_branch L_k3_backq{b}"])
        return [("vmw", ("dat", b))] + test + [("seq", [f"s_cbranch_vccnz L_k3_slowq{b}", f"L_k3_backq{b}:"])]
    tail_items = []
    for i, b in enumerate(range(8 - NS, 8)):
        land[b] = WR + 8 * i
        st.append((cfg["t8d"] - 2 if b == 7 else cfg["t8b"] + 4 * i, 2, sent_ld(b, land[b])))
        tail_items += sent_chk(b, land[b]) + accum(b, land[b])
    st.sort(key=lambda x: x[0])
    steps.append(step(17, cfg['LA3'], head=stamp_item(5), streams=st))
    uniq, k = [], 0
    site = [c for c in slow if "@" in c[0]]
    slow[:] = [c for c in slow if "@" not in c[0]]
    prev = None
    for i, body in enumerate(steps):
        if any("@" in x for x in body):
            code = site[k]
            k += 1
            if body != prev:
                lab = f"s{i}"
                slow.append([x.replace("@", lab) for x in code])
            prev = body
            steps[i] = [x.replace("@", lab) for x in body]
    i = 0
    while i < len(steps):
        e = i
        while e + 1 < len(steps) and steps[e + 1] == steps[i]:
            e += 1
        if e > i:
            A(f"s_mov_b32 s{S_LP}, {e - i + 1}")
            A(f"L_k3_loop{i}:")
            body = list(steps[i])
            cut = len(body)
            while cut > len(body) - 2 and body[cut - 1].startswith(("v_mfma", "buffer_", "v_add", "v_and", "v_lsh")):
                cut -= 1
            A.ext(body[:cut])
            A(f"s_sub_u32 s{S_LP}, s{S_LP}, 1")
            A(f"s_cmp_lg_u32 s{S_LP}, 0")
            A.ext(body[cut:])
            A(f"s_cbranch_scc1 L_k3_loop{i}")
        else:
            A.ext(steps[i])
        i = e + 1
    tail = []
    fin = [f"v_fma_f32 v{SUM + i}, v{FIN + i}, v{RS + i // 4}, v{SUM + i}" for i in range(16)]
    for it in fin + tail_items:
        put(tail, it)
    for m in range(4):
        tail += [f"v_cvt_pk_bf16_f32 v{PK + 2 * m + h}, v{SUM + 4 * m + 2 * h}, v{SUM + 4 * m + 2 * h + 1}" for h in range(2)]
        tail += [f"buffer_store_dwordx2 {v(PK + 2 * m, 2)}, v{VO}, {so}, s{S_OO} offen{OST}", f"s_add_u32 s{S_OO}, s{S_OO}, 18432"]
    if STEPPROF:
        A("s_memtime s[68:69]")
    A.ext(tail)
    stamp(A, 6, 1)
    if STEPPROF:
        A("s_waitcnt lgkmcnt(0)")
        A("v_lshrrev_b32 v1, 6, v0")
        A("v_lshlrev_b32 v1, 7, v1")
        A("s_lshl_b32 s70, s2, 9")
        A(f"s_add_u32 s70, s70, {PROF_OFF + (8 << 20)}")
        A("s_mov_b32 s10, 0x10000000")
        for n in range(19):
            A(f"v_mov_b32 v4, s{32 + 2 * n}")
            A(f"buffer_store_dword v4, v1, {ws}, s70 offen offset:{4 * n}")
        A(f"v_mov_b32 v4, s{S_SP}")
        A(f"buffer_store_dword v4, v1, {ws}, s70 offen offset:{4 * 19}")
    prof_flush(A, 0)
    A("L_exit:")
    A("s_endpgm")
    for code in slow:
        A.ext(code)
```

```python
from common import *
from front import cmul, mf

STG_ROW = 528
STG_WAVE = 56 * STG_ROW
IMG = 4 * STG_WAVE
LNB = IMG + 4096
LN_RS, LN_R = 1216, 9760
RED = 147456
K12_LDS = IMG + 36864

S_WAVE = 3
S_DBG, S_WS, S_X, S_D, S_W = 4, 8, 12, 16, 20
S_CH, S_KT = 24, 25
S_T = 26
S_P = 32
S_U = 62
S_SP, S_HO = 72, 73
CFG = dict(noshuf=0, cpf=1, g0=3, gs=0, gj0=10, gstep=9, st_at=26, stl=2, sx=1, w1s=1, wnt=1, pnt=1, xnt=0, pf=1, se=0)

ws = f"s[{S_WS}:{S_WS + 3}]"
GP, GZ = 84, 92
GX = 164
GS = 180
GA = 136
S_CW, S_ZF = 75, 80
S_DS = 16
dbg = f"s[{S_DBG}:{S_DBG + 3}]"
xs = f"s[{S_X}:{S_X + 3}]"
ZTARGET = 25


def gather(i):
    return f"buffer_load_dwordx2 {v(GX + 2 * i, 2)}, v{GA}, {xs}, s{S_U + 8 + i // 4} offen offset:{1152 * (i % 4)}"


STLOAD = [f"buffer_load_dwordx4 {v(GS + 4 * k, 4)}, v{GA + 1}, {ws}, 0 offen offset:{16 * k} sc1" for k in range(4)]


def zf_scalar(off):
    return f"s_load_dword s{S_ZF}, s[{S_P + 26}:{S_P + 27}], {off}"


def zf_check(A, tag, off, target, vr, sp=None):
    sp = S_SP if sp is None else sp
    A("s_waitcnt lgkmcnt(0)")
    A(f"s_cmp_lt_u32 s{S_ZF}, {target}")
    A(f"s_cbranch_scc1 L_zf{tag}")
    A(f"L_zfok{tag}:")
    base = f"s[{S_P + 26}:{S_P + 27}]"
    if target == 1:
        get = [f"v_mov_b32 v{vr}, {off}", f"global_load_dword v{vr}, v{vr}, {base} sc1", "s_waitcnt vmcnt(0)"]
    else:
        get = [f"v_mov_b32 v{vr}, 0", "s_mov_b64 exec, 1", f"global_atomic_add v{vr}, v{vr}, v{vr}, {base} offset:{off} sc0 sc1",
               "s_mov_b64 exec, -1", "s_waitcnt vmcnt(0)"]
    SLOW.append([f"L_zf{tag}:"] + get + [f"v_readfirstlane_b32 s{S_ZF}, v{vr}", f"s_cmp_ge_u32 s{S_ZF}, {target}",
                 f"s_cbranch_scc1 L_zfok{tag}", f"s_cmp_eq_u32 s{sp}, 0", f"s_cbranch_scc1 L_zfok{tag}",
                 f"s_sub_u32 s{sp}, s{sp}, 1", "s_sleep 2", f"s_branch L_zf{tag}"])


XF, UF, NPK = 40, 72, 196


def normalise1():
    out = []
    for b in range(4):
        for k in range(4):
            r = GX + 4 * k + (b >> 1)
            out.append(f"v_perm_b32 v{NPK + 16 + 4 * b + k}, v{r + 2}, v{r}, s{S_DS + 1 + (b & 1)}")
        out += [f"v_xor_b32 v3, {64 + 16 * b}, v{CO}", f"ds_write_b128 v3, {v(NPK + 16 + 4 * b, 4)}"]
    for i in range(16):
        out += [f"v_lshlrev_b32 v{XF + 2 * i}, 16, v{GX + i}", f"v_and_b32 v{XF + 2 * i + 1}, 0xffff0000, v{GX + i}"]
    return out


def normalise2(A):
    for h in range(2):
        for i in range(8):
            sp, r = v(GS + 2 * i, 2), 4 * i + 2 * h
            A(f"v_pk_fma_f32 {v(UF + r, 2)}, {v(XF + r, 2)}, {sp}, {sp} op_sel:[0,0,1] op_sel_hi:[1,0,1]")
        for b in (2 * h, 2 * h + 1):
            for k in range(4):
                A(f"v_cvt_pk_bf16_f32 v{NPK + 4 * b + k}, v{UF + 8 * k + b}, v{UF + 8 * k + 4 + b}")
            A(f"v_xor_b32 v1, {16 * b}, v{CO}")
            A(f"ds_write_b128 v1, {v(NPK + 4 * b, 4)}")


SLOW = []


def spin(tag, load, target, reg):
    SLOW.append([f"L_slow{tag}:", f"s_cmp_eq_u32 s{S_SP}, 0", f"s_cbranch_scc1 L_back{tag}", f"s_sub_u32 s{S_SP}, s{S_SP}, 1",
                 "s_sleep 1"] + load + ["s_waitcnt vmcnt(0)", f"v_cmp_ne_u32 vcc, {target}, v{reg}",
                 f"s_cbranch_vccnz L_slow{tag}", f"s_branch L_back{tag}"])
    return [f"v_cmp_ne_u32 vcc, {target}, v{reg}", f"s_cbranch_vccnz L_slow{tag}", f"L_back{tag}:"]


def kgen_issue(A):
    A(f"s_lshl_b32 s{S_T + 2}, s{S_CH}, 8")
    A(f"v_lshl_add_u32 v1, v2, 2, s{S_T + 2}")
    for i in range(6):
        A(f"global_load_dword v{GP + i}, v1, s[{S_P + 2 + 2 * i}:{S_P + 3 + 2 * i}]{' nt' if CFG['pnt'] else ''}")
    A(f"s_lshl_b32 s{S_T + 2}, s{S_CH}, 1")
    A(f"v_mov_b32 v1, s{S_T + 2}")
    A(f"global_load_ushort v{GP + 6}, v1, s[{S_P + 14}:{S_P + 15}]")


def kgen_valu(A, glate):
    U, DT, ADR = 4, 16, 17
    for i in range(6):
        A(f"v_lshlrev_b32 v{U + 2 * i}, 16, v{GP + i}")
        A(f"v_and_b32 v{U + 2 * i + 1}, 0xffff0000, v{GP + i}")
    A(f"v_lshlrev_b32 v{DT}, 16, v{GP + 6}")
    A(f"v_mul_f32 v{DT}, {LOG2E}, v{DT}")
    A(f"v_exp_f32 v{DT}, v{DT}")
    A(f"s_mul_i32 s{S_T}, s{S_WAVE}, {STG_WAVE}")
    A(f"v_lshl_add_u32 v{ADR}, v2, 3, s{S_T}")
    A(f"v_cvt_pk_bf16_f32 v{DT}, v{DT}, v{DT}")
    A(f"v_and_b32 v{DT}, 0xffff0000, v{DT}")
    for i in range(4):
        A(f"v_pk_mul_f32 {v(U + 2 * i, 2)}, {v(U + 2 * i, 2)}, {v(DT, 2)} op_sel_hi:[1,0]")
    for m in range(2):
        A(f"v_mul_f32 v{U + m}, {LOG2E}, v{U + m}")
        A(f"v_mul_f32 v{U + 2 + m}, {INV2PI}, v{U + 2 + m}")
    names = ["z1", "z8", "w", "z2", "z3", "z4", "z6", "t0", "t1", "p0", "p1", "y0", "y1"]
    R = {n: 48 + 4 * i if i < 8 else 100 + 4 * (i - 8) for i, n in enumerate(names)}
    TMP = 20
    for nm, lit in (("z8", "0x41000000"), ("z1", None), ("w", "0x43800000")):
        if lit:
            for m in range(2):
                A(f"v_mul_f32 v{TMP + m}, {lit}, v{U + m}")
                A(f"v_mul_f32 v{TMP + 2 + m}, {lit}, v{U + 2 + m}")
        src = TMP if lit else U
        for m in range(2):
            A(f"v_fract_f32 v{TMP + 2 + m}, v{src + 2 + m}")
        for m in range(2):
            A(f"v_exp_f32 v{TMP + m}, v{src + m}")
        for m in range(2):
            A(f"v_cos_f32 v{R[nm] + 2 * m}, v{TMP + 2 + m}")
            A(f"v_sin_f32 v{R[nm] + 2 * m + 1}, v{TMP + 2 + m}")
        A(f"v_pk_mul_f32 {v(R[nm], 2)}, {v(R[nm], 2)}, {v(TMP, 2)} op_sel_hi:[1,0]")
        A(f"v_pk_mul_f32 {v(R[nm] + 2, 2)}, {v(R[nm] + 2, 2)}, {v(TMP, 2)} op_sel:[0,1] op_sel_hi:[1,1]")
    for m in range(2):
        y = R["y0"] + 2 * m
        A(f"v_mul_f32 v{y}, v{U + 8 + m}, v{U + 4 + m}")
        A(f"v_mul_f32 v{y + 1}, v{U + 8 + m}, v{U + 6 + m}")
    for m in range(2):
        y = R["y0"] + 2 * m
        A(f"v_fma_f32 v{y}, -v{U + 10 + m}, v{U + 6 + m}, v{y}")
        A(f"v_fma_f32 v{y + 1}, v{U + 10 + m}, v{U + 4 + m}, v{y + 1}")
    offs = [[0, 1, 2, 3, 4, 5, 6, 7], [256, 256, 258, 260, 260, 260, 262, 264]]
    rows = {}
    for hi in range(2):
        for i in range(12):
            e = offs[hi][i] if i < 8 else (520, 516, 1032, 1544)[i - 8] + 256 * hi
            rows.setdefault(e, []).append(8 * (i >> 2) + 4 * hi + (i & 3))
    PK = [84, 86, 88, 90]
    pk = [0]

    def emit(reg, rws, neg):
        d = PK[pk[0] % 4]
        pk[0] += 1
        n = "-" if neg else ""
        out = [f"v_cvt_pk_bf16_f32 v{d + m}, v{reg + 2 * m}, {n}v{reg + 2 * m + 1}" for m in range(2)]
        out += [f"ds_write_b64 v{ADR}, {v(d, 2)} offset:{r * STG_ROW}" for r in rws]
        return out

    def both(d, x, y):
        c0, c1 = cmul(R[d], R[x], R[y]), cmul(R[d] + 2, R[x] + 2, R[y] + 2)
        return [c0[0], c1[0], c0[1], c1[1]]
    A("v_mov_b32 v24, 0x3f80")
    A("v_mov_b32 v25, 0x3f80")
    A.ext([f"ds_write_b64 v{ADR}, v[24:25] offset:{r * STG_ROW}" for r in rows[0]])
    A.ext(emit(R["z1"], rows[1], 0) + emit(R["w"], rows[256], 0))
    chain = [("z2", "z1", "z1", 2), ("p0", "w", "z8", 264), ("z3", "z2", "z1", 3), ("z4", "z2", "z2", 4),
             ("p1", "p0", "w", 520), ("t0", "w", "z2", 258), ("t1", "z4", "z1", 5), ("p0", "p1", "w", 776),
             ("z6", "z4", "z2", 6), ("t0", "z4", "z3", 7), ("p1", "p0", "w", 1032), ("t1", "w", "z4", 260),
             ("t0", "w", "z6", 262), ("p0", "p1", "w", 1288), ("z3", "t1", "w", 516), ("p1", "p0", "w", 1544),
             ("t0", "z3", "w", 772), ("p0", "p1", "w", 1800)]
    xi = iter(chain)
    cur, nxt = "y0", "y1"
    for j in range(32):
        if glate and j >= CFG["gj0"] and (j - CFG["gj0"]) % CFG["gstep"] == 0:
            A(glate.pop(0))
        if j == CFG["st_at"]:
            A(zf_scalar(0))
        ops = both(nxt, cur, "z8") if j < 31 else []
        ey = emit(R[cur], [24 + j], 1)
        A.ext(ops[:2] + ey[:2] + ops[2:] + ey[2:])
        c = next(xi, None)
        if c:
            A.ext(both(c[0], c[1], c[2]))
            A.ext(emit(R[c[0]], rows[c[3]], 0))
        cur, nxt = nxt, cur


def kgen_contract(A, glate):
    ACC = 4
    A("v_and_b32 v1, 31, v2")
    A(f"v_mul_u32_u24 v1, {STG_ROW}, v1")
    A("v_lshrrev_b32 v3, 5, v2")
    A("v_lshl_add_u32 v1, v3, 4, v1")
    A(f"v_add_u32 v1, s{S_T}, v1")
    lg = Cnt("lgkmcnt", 15)
    zf_check(A, "c", 0, 1, 3)
    if CFG["stl"] == 0:
        A.ext(glate + STLOAD)
        del glate[:]

    def rd(k):
        lg.issue()
        lg.issue(("f", k))
        return [f"ds_read_b128 {a(4 * k, 4)}, v1 offset:{32 * k}",
                f"ds_read_b128 {a(64 + 4 * k, 4)}, v1 offset:{32 * k + 24 * STG_ROW}"]
    AHEAD = 6
    for k in range(AHEAD):
        A.ext(rd(k))
    for k in range(16):
        A.ext(lg.wait(("f", k)))
        A(f"v_mfma_f32_32x32x16_bf16 {v(ACC, 16)}, {a(4 * k, 4)}, {a(64 + 4 * k, 4)}, {'0' if k == 0 else v(ACC, 16)}")
        if k + AHEAD < 16:
            A.ext(rd(k + AHEAD))
        if k == 4 and len(glate) > 1:
            A(glate.pop(0))
    if CFG["stl"] == 1:
        A.ext(glate + STLOAD)
        del glate[:]
    D0, D2, D1, D3, Z = 24, 28, 32, 36, GZ
    A(f"v_add_f32 v{ACC}, v{ACC}, v{TA + 7}")
    for k in range(4):
        A(f"v_cvt_pk_bf16_f32 v{D0 + k}, v{ACC + 2 * k}, v{ACC + 2 * k + 1}")
    A(f"v_cvt_pk_bf16_f32 v20, v{ACC + 8}, v{ACC + 9}")
    A(f"v_cvt_pk_bf16_f32 v21, v{ACC + 10}, v{ACC + 11}")
    A(f"ds_write_b128 v{TA}, {v(D0, 4)} offset:32")
    A(f"v_mov_b32_dpp v{D2}, v{D0 + 3} wave_shr:1 row_mask:0xf bank_mask:0xf bound_ctrl:1")
    A(f"v_mov_b32_dpp v22, v{D0 + 2} wave_shr:1 row_mask:0xf bank_mask:0xf bound_ctrl:1")
    for k in range(3):
        A(f"v_mov_b32 v{D2 + 1 + k}, v{D0 + k}")
    A(f"v_readlane_b32 s{S_T + 1}, v{D0 + 2}, 63")
    A(f"v_readlane_b32 s{S_T + 2}, v{D0 + 3}, 63")
    A(f"v_readlane_b32 s{S_T + 5}, v20, 63")
    A(f"ds_write_b128 v{TA}, {v(D2, 4)} offset:{32 + 2 * TSTR}")
    for k in range(4):
        A(f"v_alignbit_b32 v{D1 + k}, v{D0 + k}, v{D2 + k}, 16")
    A(f"ds_write_b128 v{TA}, {v(D1, 4)} offset:{32 + TSTR}")
    A(f"v_alignbit_b32 v{D3}, v{D2}, v22, 16")
    for k in range(3):
        A(f"v_mov_b32 v{D3 + 1 + k}, v{D1 + k}")
    A(f"ds_write_b128 v{TA}, {v(D3, 4)} offset:{32 + 3 * TSTR}")
    A(f"s_lshr_b32 s{S_T + 1}, s{S_T + 1}, 16")
    A(f"s_pack_ll_b32_b16 s{S_T + 1}, s{S_T + 1}, s{S_T + 2}")
    A(f"s_pack_hh_b32_b16 s{S_T + 3}, s{S_T + 2}, s{S_T + 2}")
    A(f"s_lshr_b32 s{S_T + 4}, s{S_T + 2}, 16")
    A(f"s_pack_ll_b32_b16 s{S_T + 5}, s{S_T + 5}, s{S_T + 5}")
    AA, BB, KK, K0 = S_T + 1, S_T + 2, S_T + 3, S_T + 4
    for r, row in enumerate(((KK, K0), (KK, KK), (BB, KK, K0), (AA, KK, KK))):
        for k, sr in enumerate(row):
            A(f"v_writelane_b32 v{Z + k}, s{sr}, {8 * r + 2}")
    A(f"ds_write_b32 v{TA + 1}, v20")
    A(f"ds_write_b16 v{TA + 2}, v21 offset:128")
    A(f"ds_write_b16_d16_hi v{TA + 2}, v21")
    A(f"ds_write_b128 v{TA + 3}, {v(Z, 4)}")
    for k in range(4):
        A(f"v_and_b32 v{CF + k}, s{S_T + 5}, v{CF + k}")
    if CFG["stl"] == 2:
        A.ext(glate + STLOAD)
        del glate[:]
    for i in (4, 6, 8, 3, 5, 7):
        A(f"ds_read2_b64 {a(A2 + 4 * (i - 3), 4)}, v{TA + 4} offset0:{8 * (8 - i)} offset1:{8 * (8 - i) + 1}")
    for i in range(4, 8):
        for h in range(2):
            o = 16 * (7 - i) + 2 * h
            A(f"ds_read2_b32 {a(A3 + 4 * (i - 4) + 2 * h, 2)}, v{TA + 5} offset0:{o} offset1:{o + 1}")
    for q in range(17):
        for h in range(2):
            A(f"ds_read_b64_tr_b16 {a(AK + 4 * q + 2 * h, 2)}, v{TA + 6} offset:{64 * q + 8 * (1 - h)}")


CA = 4
AK, A2, A3, AW = 128, 196, 220, 236
TA = 128
TSTR, TB2 = 1216, 4864
CF = 144
CB = 148
CU = 164
CD = 196
CW = 220
CAD = 232
CO = 244


def conv_setup(A, glate):
    A("v_lshlrev_b32 v1, 4, v0")
    A(f"v_add_u32 v1, {IMG}, v1")
    A(f"ds_write_b128 v1, {v(GZ, 4)}")
    lo, g, dl, t = CD, CD + 1, CD + 2, CD + 4
    A(f"v_and_b32 v{lo}, 15, v2")
    A(f"v_lshrrev_b32 v{g}, 4, v2")
    A(f"v_lshlrev_b32 v{dl}, 3, v{g}")
    A(f"v_sub_u32 v{dl}, v{lo}, v{dl}")
    A(f"s_mov_b32 s{S_T + 3}, 0x8001")
    A(f"s_mov_b32 s{S_T + 4}, 0x10001")
    bands = [(6, 10, CB, 0x3f80), (11, 13, CB + 4, 0x3f80), (4, 12, CB + 8, 0x3f80), (5, 11, CB + 12, 0x3f80),
             (12, 13, CF, 0xffff)]
    for b0, b1, d, one in bands:
        A(f"v_add_u32 v{t + 2}, {b0 + 32}, v{dl}")
        A(f"v_mov_b32 v{t}, {(1 << (b1 - b0 + 1)) - 1}")
        A(f"v_mov_b32 v{t + 1}, 0")
        A(f"v_lshlrev_b64 {v(t, 2)}, v{t + 2}, {v(t, 2)}")
        for k in range(4):
            A(f"v_bfe_u32 v{d + k}, v{t + 1}, {2 * k}, 2")
        for k in range(4):
            A(f"v_mul_u32_u24 v{d + k}, s{S_T + 3}, v{d + k}")
        for k in range(4):
            A(f"v_and_b32 v{d + k}, s{S_T + 4}, v{d + k}")
        for k in range(4):
            A(f"v_mul_u32_u24 v{d + k}, {one}, v{d + k}")
    if glate:
        A(glate.pop(0))
    A(f"s_mov_b32 s{S_T + 3}, {IMG}")

    def addr(dst, row, piece_extra=0):
        A(f"v_bfe_u32 v{t}, v{row}, 1, 3")
        A(f"v_xor_b32 v{t}, s{S_WAVE}, v{t}")
        if piece_extra:
            A(f"v_xor_b32 v{t}, {piece_extra}, v{t}")
        A(f"v_lshl_add_u32 v{t}, v{t}, 4, s{S_T + 3}")
        A(f"v_lshl_add_u32 v{dst}, v{row}, 7, v{t}")
    row, r2 = t + 2, t + 3
    A(f"v_lshl_add_u32 v{r2}, v{lo}, 1, v{g}")
    for r in range(4, 8):
        A(f"v_add_u32 v{row}, {30 - 4 * r}, v{r2}")
        addr(CAD + r - 4, row)
    A(f"v_add3_u32 v{row}, v{lo}, v{g}, 29")
    addr(CAD + 4, row)
    A(f"v_add_u32 v{row}, 29, v{r2}")
    addr(CAD + 5, row)
    A(f"v_lshrrev_b32 v{r2}, 1, v{g}")
    A(f"v_lshl_add_u32 v{row}, v{lo}, 1, v{r2}")
    A(f"v_add_u32 v{row}, 32, v{row}")
    addr(CAD + 6, row, 4)
    A(f"v_and_b32 v{row}, 1, v{g}")
    A(f"v_lshl_add_u32 v{CAD + 6}, v{row}, 3, v{CAD + 6}")
    A(f"v_lshrrev_b32 v{t}, 2, v{lo}")
    A(f"v_lshl_add_u32 v{t}, v{row}, 2, v{t}")
    A(f"v_mul_u32_u24 v{t}, 73728, v{t}")
    A(f"s_bfe_u32 s{S_T + 4}, s{S_CH}, 0x20001")
    A(f"v_and_b32 v{t + 1}, 3, v{lo}")
    A(f"v_xor_b32 v{t + 1}, s{S_T + 4}, v{t + 1}")
    A(f"v_lshl_add_u32 v{t}, v{t + 1}, 5, v{t}")
    A(f"v_lshl_add_u32 v{CAD + 7}, v{r2}, 4, v{t}")
    A(f"s_lshl_b32 s{S_HO}, s{S_CH}, 7")
    A(f"s_add_u32 s{S_HO}, s{S_HO}, {HT}")
    A(f"s_mul_i32 s{S_T + 3}, s{S_WAVE}, {STG_WAVE}")
    A(f"v_lshl_add_u32 v{TA}, v2, 4, s{S_T + 3}")
    A(f"s_add_u32 s{S_T + 4}, s{S_T + 3}, {TB2 + R2B + 380}")
    A(f"v_lshlrev_b32 v{t}, 2, v2")
    A(f"v_sub_u32 v{TA + 1}, s{S_T + 4}, v{t}")
    A(f"s_add_u32 s{S_T + 4}, s{S_T + 3}, {TB2 + R3B + 126}")
    A(f"v_lshlrev_b32 v{t}, 1, v2")
    A(f"v_sub_u32 v{TA + 2}, s{S_T + 4}, v{t}")
    A(f"v_and_b32 v{t}, 7, v2")
    A(f"v_lshrrev_b32 v{t + 1}, 1, v{t}")
    A(f"v_min_u32 v{t + 1}, 1, v{t + 1}")
    A(f"v_lshlrev_b32 v{t + 1}, 10, v{t + 1}")
    A(f"v_bfe_u32 v{row}, v2, 3, 2")
    A(f"v_mul_u32_u24 v{r2}, {TSTR}, v{row}")
    A(f"v_add_u32 v{t + 1}, v{t + 1}, v{r2}")
    A(f"v_and_b32 v{row}, 1, v{row}")
    A(f"v_mul_u32_u24 v{row}, 384, v{row}")
    A(f"v_add_u32 v{row}, {TB2 + 256}, v{row}")
    A("v_cmp_gt_u32 vcc, 32, v2")
    A(f"v_cndmask_b32 v{t + 1}, v{row}, v{t + 1}, vcc")
    A(f"v_lshl_add_u32 v{t}, v{t}, 4, s{S_T + 3}")
    A(f"v_add_u32 v{TA + 3}, v{t}, v{t + 1}")
    A(f"v_and_b32 v{g}, 48, v2")
    A(f"v_add_u32 v{r2}, s{S_T + 3}, v{g}")
    A(f"v_lshlrev_b32 v{t}, 3, v{lo}")
    A(f"v_sub_u32 v{t}, v{r2}, v{t}")
    A(f"v_add_u32 v{TA + 4}, {TB2 + R2B + 120}, v{t}")
    A(f"v_lshlrev_b32 v{t}, 2, v{lo}")
    A(f"v_sub_u32 v{t}, v{r2}, v{t}")
    A(f"v_add_u32 v{TA + 5}, {TB2 + R3B + 60}, v{t}")
    A(f"v_bfe_u32 v{t}, v2, 2, 2")
    A(f"v_mul_u32_u24 v{t}, {TSTR}, v{t}")
    A(f"v_and_b32 v{t + 1}, 3, v2")
    A(f"v_lshl_add_u32 v{t}, v{t + 1}, 3, v{t}")
    A(f"v_sub_u32 v{t}, v{t}, v{g}")
    A(f"v_add3_u32 v{TA + 6}, v{t}, s{S_T + 3}, 56")
    A(f"v_lshlrev_b32 v{CAD + 11}, 4, v2")
    A(f"v_bfe_u32 v{t}, v0, 1, 3")
    A(f"v_lshlrev_b32 v{t}, 4, v{t}")
    A(f"v_lshl_add_u32 v{t}, v0, 7, v{t}")
    A(f"v_add_u32 v{CO}, {IMG + 4096}, v{t}")
    A("s_waitcnt lgkmcnt(0)")
    A(f"s_bitcmp1_b32 s{S_WAVE}, 1")
    A(f"s_cselect_b32 s{S_DS}, s83, s82")
    A(f"s_lshl_b32 s{S_DS + 1}, s{S_DS}, 16")
    A(f"s_and_b32 s{S_DS + 2}, s{S_DS}, 0xffff0000")
    A(f"s_bitcmp1_b32 s{S_WAVE}, 0")
    A(f"s_cselect_b32 s{S_DS}, s{S_DS + 2}, s{S_DS + 1}")
    A(f"v_mov_b32 v{TA + 7}, 0")
    A(f"v_writelane_b32 v{TA + 7}, s{S_DS}, 0")
    A(f"s_mov_b32 s{S_DS + 1}, 0x05040100")
    A(f"s_mov_b32 s{S_DS + 2}, 0x07060302")


def mfx(d, x, y, c):
    return f"v_mfma_f32_16x16x32_bf16 {v(d, 4)}, {x}, {y}, {c if isinstance(c, str) else v(c, 4)}"


def conv_main(A):
    lg = Cnt("lgkmcnt", 15)
    reads = [("x2", j, CAD + 4, 2048 * j) for j in range(12)]
    for j in range(4):
        reads += [("x3e", j, CAD + 5, 4096 * j), ("x3o", j, CAD + 0, 2048 + 4096 * j)]
    for Tp in range(8):
        for r in range(8):
            reads.append(("d", (Tp, r), CAD + (r & 3), (2048 if r < 4 else 0) + 4096 * Tp))
    slot = {(k, i): CU + 4 * (n % 8) for n, (k, i, _, _) in enumerate(reads)}
    nxt = [0]
    started = set()

    def put(it):
        if it == "rd":
            if nxt[0] < len(reads):
                k, i, ad, off = reads[nxt[0]]
                nxt[0] += 1
                lg.issue((k, i))
                A(f"ds_read_b128 {v(slot[(k, i)], 4)}, v{ad} offset:{off}")
        elif isinstance(it, tuple):
            if it[0] == "lg":
                lg.issue(it[1])
                A(it[2])
            else:
                A.ext(lg.wait(it[1]))
        else:
            A(it)

    def acc(T, x, y):
        c = CA + 4 * T if T in started else "0"
        started.add(T)
        return mfx(CA + 4 * T, x, y, c)

    def weave(ms, fill):
        fill = list(fill)
        for i, (w, m) in enumerate(ms):
            for x in w:
                put(x)
            A(m)
            n = len(fill) if i == len(ms) - 1 else 2 - min(1, len(ms[i + 1][0]))
            for x in fill[:n]:
                put(x)
            fill = fill[n:]
    for _ in range(6):
        put("rd")
    boxes = [("x2", j) for j in range(12)] + [("x3", j) for j in range(4)]
    NB = len(boxes)
    for n in range(NB + 2):
        ms, f1, cv = [], [], []
        if n >= 2:
            k, j = boxes[n - 2]
            w = CW + 4 * ((n - 2) % 3)
            for T in range(8):
                if k == "x2" and 3 <= 2 * T - j <= 8:
                    ms.append(([], acc(T, v(w, 4), a(A2 + 4 * (2 * T - j - 3), 4))))
                if k == "x3" and 4 <= T - j <= 7:
                    ms.append(([], acc(T, v(w, 4), a(A3 + 4 * (T - j - 4), 4))))
        if n < NB:
            k, j = boxes[n]
            d = CD + 8 * (n % 3)
            if k == "x2":
                ms = [([("lgw", ("x2", j))], mf(d, slot[("x2", j)], CB, "0")), ([], mf(d + 4, slot[("x2", j)], CB + 4, "0"))] + ms
                f1 = ["rd"]
            else:
                ms = [([("lgw", ("x3o", j))], mf(d, slot[("x3e", j)], CB + 8, "0")), ([], mf(d + 4, slot[("x3o", j)], CB + 12, "0"))] + ms
                f1 = ["rd", "rd"]
        if 1 <= n <= NB:
            d = CD + 8 * ((n - 1) % 3)
            cv = [f"v_cvt_pk_bf16_f32 v{CW + 4 * ((n - 1) % 3) + i}, v{d + i}, v{d + 4 + i}" for i in range(4)]
        weave(ms, f1 + cv)

    def epi(T):
        o, rr, tm = CO + 2 * (T & 1), CO + 4, CD
        out = [("lgw", ("r", T))]
        for h in range(2):
            out += [f"v_lshlrev_b32 v{tm + 2 * h}, 16, v{rr + h}", f"v_and_b32 v{tm + 2 * h + 1}, 0xffff0000, v{rr + h}"]
        out += [f"v_add_f32 v{tm + i}, v{tm + i}, v{CA + 4 * T + i}" for i in range(4)]
        out += [f"v_cvt_pk_bf16_f32 v{o + h}, v{tm + 2 * h}, v{tm + 2 * h + 1}" for h in range(2)]
        if T & 1:
            out += [f"s_add_u32 s{S_T}, s{S_HO}, {294912 * (T - 1)}", f"v_permlane16_swap_b32 v{CO}, v{CO + 2}",
                    f"v_permlane16_swap_b32 v{CO + 1}, v{CO + 3}",
                    f"buffer_store_dwordx4 {v(CO, 4)}, v{CAD + 7}, {ws}, s{S_T} offen sc1"]
        return out
    pend = []
    for Tp in range(8):
        for r in range(8):
            u = v(slot[("d", (Tp, r))], 4)
            ms = [([("lgw", ("d", (Tp, r)))], acc(Tp, a(AK + 4 * r, 4), u))]
            if Tp + 1 < 8:
                ms.append(([], acc(Tp + 1, a(AK + 4 * r + 32, 4), u)))
            if r == 0:
                if Tp + 2 < 8:
                    ms.append(([], acc(Tp + 2, a(AK + 64, 4), u)))
                if Tp + 4 < 8:
                    ms.append(([], acc(Tp + 4, v(CF, 4), u)))
            if r & 1:
                ms = [(ms[0][0], m) if i == 0 else ([], m) for i, m in enumerate([x[1] for x in ms][::-1])]
            take = 2 if r >= 1 else 0
            fl, pend = pend[:take + (1 if pend and isinstance(pend[0], tuple) else 0)] if take else [], pend[take + (1 if pend and isinstance(pend[0], tuple) else 0):] if take else pend
            extra = []
            if r == 7:
                fl, pend = fl + pend, []
                extra = [("lg", ("r", Tp), f"ds_read_b64 {v(CO + 4, 2)}, v{CAD + 6} offset:{4096 * Tp}")]
            weave(ms, fl + extra + ["rd"])
        pend = epi(Tp)
    for x in pend:
        put(x)


SH = 120
SV = 124
SF = 128


def shuf_addr(A, lds_base):
    A("v_lshrrev_b32 v1, 3, v2")
    A(f"v_mul_u32_u24 v{SV}, s{S_U + 1}, v1")
    A("v_lshrrev_b32 v1, 4, v2")
    A("v_lshlrev_b32 v1, 1, v1")
    A("v_xor_b32 v1, v1, v2")
    A("v_and_b32 v1, 7, v1")
    A(f"v_lshl_add_u32 v{SV}, v1, 4, v{SV}")
    A("v_lshrrev_b32 v1, 2, v2")
    A(f"v_lshl_add_u32 v{SH}, v1, 7, s{lds_base}")
    A("v_bfe_u32 v1, v2, 3, 2")
    A(f"v_lshl_add_u32 v{SH}, v1, 5, v{SH}")
    A("v_and_b32 v1, 3, v2")
    A(f"v_lshl_add_u32 v{SH}, v1, 3, v{SH}")
    for m in range(1, 4):
        A(f"v_xor_b32 v{SH + m}, {32 * m}, v{SH}")
    A(f"v_lshlrev_b32 v{SV + 1}, 4, v2")


def shuf_dma(A, lds_off):
    for q in range(4):
        A(f"s_add_u32 m0, s{S_U + 4}, {lds_off + 1024 * q}")
        if q:
            A(f"s_add_u32 s{S_U + 2}, s{S_U + 2}, s{S_U + 6}")
        A(f"buffer_load_dwordx4 v{SV}, s[{S_W}:{S_W + 3}], s{S_U + 2} offen {'nt ' if CFG['wnt'] else ''}lds")
    A(f"s_add_u32 s{S_U + 2}, s{S_U + 2}, s{S_U + 7}")


def shuf_read(A, dst, off, reg=v):
    for c in range(4):
        for h in range(2):
            A(f"ds_read_b64_tr_b16 {reg(dst + 4 * c + 2 * h, 2)}, v{SH + c} offset:{off + 2048 * h}")


def w2_task(A):
    unit, ks = S_T + 2, S_T + 3
    srd(A, S_W, S_P + 22, W_BYTES)
    A(f"s_mul_hi_u32 s{unit}, s{S_T + 4}, 0xe38e38f")
    A(f"s_mul_i32 s{ks}, s{unit}, 18")
    A(f"s_sub_u32 s{ks}, s{S_T + 4}, s{ks}")
    A(f"s_mul_hi_u32 s{S_U + 2}, s{unit}, 0x1c71c71d")
    A(f"s_mul_i32 s{S_U + 2}, s{S_U + 2}, {576 * 1152 - 9 * 128}")
    A(f"s_lshl_b32 s{S_U + 3}, s{unit}, 7")
    A(f"s_add_u32 s{S_U + 2}, s{S_U + 2}, s{S_U + 3}")
    A(f"s_mul_i32 s{S_U + 3}, s{ks}, {32 * 1152}")
    A(f"s_add_u32 s{S_U + 2}, s{S_U + 2}, s{S_U + 3}")
    A(f"s_mul_i32 s{S_U + 3}, s{unit}, 73728")
    A(f"s_lshl_b32 s{S_U + 5}, s{ks}, 10")
    A(f"s_add_u32 s{S_U + 3}, s{S_U + 3}, s{S_U + 5}")
    A(f"s_add_u32 s{S_U + 3}, s{S_U + 3}, {W2S}")
    A(f"s_mov_b32 s{S_U + 1}, 1152")
    A(f"s_mov_b32 s{S_U + 6}, {8 * 1152}")
    A(f"s_mov_b32 s{S_U + 7}, {8 * 1152}")


LW = 0


def late_w2_issue(A):
    A(f"s_lshl_b32 s{S_T + 4}, s2, 2")
    A(f"s_add_u32 s{S_T + 4}, s{S_T + 4}, s{S_WAVE}")
    A(f"s_add_u32 s{S_T + 4}, s{S_T + 4}, 272")
    w2_task(A)
    A(f"s_mul_i32 s{S_U + 4}, s{S_WAVE}, {STG_WAVE}")
    shuf_addr(A, S_U + 4)
    shuf_dma(A, 0)


def late_w2_read(A):
    shuf_read(A, LW, 0, a)


def late_w2_store(A):
    for c in range(4):
        A(f"buffer_store_dwordx4 {a(LW + 4 * c, 4)}, v{SV + 1}, {ws}, s{S_U + 3} offen sc1")
        A(f"s_add_u32 s{S_U + 3}, s{S_U + 3}, 18432")


def aux_stats(A):
    A(f"s_sub_u32 s{S_T}, s2, 216")
    A(f"s_mul_i32 s{S_T + 1}, s{S_WAVE}, 40")
    A(f"s_add_u32 s{S_T + 1}, s{S_T + 1}, s{S_T}")
    A("v_lshrrev_b32 v1, 3, v2")
    A("v_mul_u32_u24 v3, 1152, v1")
    A("v_and_b32 v4, 7, v2")
    A("v_lshl_add_u32 v3, v4, 4, v3")
    A(f"s_mul_i32 s{S_T + 2}, s{S_T + 1}, 9216")
    A(f"v_add_u32 v3, s{S_T + 2}, v3")
    A(f"v_add_u32 v5, {160 * 9216}, v3")
    nt = " nt" if CFG["xnt"] & 1 else ""
    for p in range(2):
        for i in range(9):
            A(f"buffer_load_dwordx4 {v(12 + 36 * p + 4 * i, 4)}, v{3 + 2 * p}, {xs}, 0 offen offset:{128 * i}{nt}")
    A("v_min_u32 v4, 1, v4")
    A("v_lshlrev_b32 v4, 31, v4")
    A("v_lshl_add_u32 v4, v1, 3, v4")
    A(f"s_min_u32 s{S_T + 4}, s{S_T}, 33")
    A(f"s_lshl_b32 s{S_T + 4}, s{S_T + 4}, 2")
    A(f"s_add_u32 s{S_T + 4}, s{S_T + 4}, s{S_WAVE}")
    A(f"s_lshl_b32 s{S_T + 4}, s{S_T + 4}, 1")
    w2_task(A)
    A(f"s_lshl_b32 s{S_U + 4}, s{S_WAVE}, 12")
    shuf_addr(A, S_U + 4)
    ne = CFG["se"]
    for n in range(ne):
        shuf_dma(A, 16384 * n)
    A(f"s_mov_b32 s{S_T + 2}, {ONES}")
    for p in range(2):
        S, Q = 7 + 2 * p, 6 + 2 * p
        for i in range(9):
            if i % 3 == 0:
                A(f"s_waitcnt vmcnt({15 - 9 * p - i + 4 * ne})")
            for k in range(4):
                r, first = 12 + 36 * p + 4 * i + k, i == 0 and k == 0
                A(f"v_dot2_f32_bf16 v{S}, v{r}, s{S_T + 2}, {'0' if first else 'v%d' % S}")
                A(f"v_dot2_f32_bf16 v{Q}, v{r}, v{r}, {'0' if first else 'v%d' % Q}")
    A(zf_scalar(0))
    A(f"s_lshl_b32 s{S_T + 2}, s{S_T + 1}, 6")
    A(f"s_add_u32 s{S_T + 2}, s{S_T + 2}, {ST}")
    A(f"s_add_u32 s{S_T + 3}, s{S_T + 2}, {160 * 64}")
    for ctl in ("quad_perm:[1,0,3,2]", "quad_perm:[2,3,0,1]", "row_half_mirror"):
        for r in (6, 7, 8, 9):
            A(f"v_add_f32_dpp v{r}, v{r}, v{r} {ctl} row_mask:0xf bank_mask:0xf")
    for r in (6, 7, 8, 9):
        A(f"v_mul_f32 v{r}, {INV576}, v{r}")
    for op in ("v_fma_f32 v{q}, -v{s}, v{s}, v{q}", "v_max_f32 v{q}, 0, v{q}", f"v_add_f32 v{{q}}, {EPS}, v{{q}}",
               "v_rsq_f32 v{q}, v{q}", "v_or_b32 v{q}, 1, v{q}", "v_mul_f32 v{s}, -v{s}, v{q}"):
        for p in range(2):
            A(op.format(q=6 + 2 * p, s=7 + 2 * p))
    stamp(A, 1)
    zf_check(A, "s", 0, 1, 3)
    A(f"buffer_store_dwordx2 v[6:7], v4, {ws}, s{S_T + 2} offen sc1")
    A(f"s_cmp_ge_u32 s{S_T + 1}, 96")
    A("s_cbranch_scc1 L_aux_4")
    A(f"buffer_store_dwordx2 v[8:9], v4, {ws}, s{S_T + 3} offen sc1")
    A("L_aux_4:")
    stamp(A, 2)
    A(f"s_cmp_ge_u32 s{S_T}, 34")
    A("s_cbranch_scc1 L_front_end")
    for n in range(ne, 2):
        shuf_dma(A, 16384 * n)
    A("s_waitcnt vmcnt(0)")
    stamp(A, 3)
    for n in range(2):
        shuf_read(A, SF + 16 * n, 16384 * n)
        A("s_waitcnt lgkmcnt(0)")
        for c in range(4):
            A(f"s_add_u32 s{S_U + 5}, s{S_U + 3}, {c * 18432 + 1024 * n}")
            A(f"buffer_store_dwordx4 {v(SF + 16 * n + 4 * c, 4)}, v{SV + 1}, {ws}, s{S_U + 5} offen sc1")
    A("s_barrier")
    A("s_branch L_front_end")


def aux_path(A):
    pre = 0
    A("s_cmp_ge_u32 s2, 216")
    A("s_cbranch_scc1 L_aux_st")
    A(f"s_sub_u32 s{S_U}, s2, 144")
    A("v_mov_b32 v5, 1")
    A(f"s_mov_b32 s{S_ZF}, 1")
    A(f"s_cmp_lg_u32 s{S_U}, 0")
    A("s_cbranch_scc1 L_aux_0")
    A("v_lshlrev_b32 v1, 4, v0")
    for i in range(4):
        A(f"s_mov_b32 s{S_T + 1}, {ST + 4096 * i}")
        A(f"buffer_store_dwordx4 {v(GZ, 4)}, v1, {ws}, s{S_T + 1} offen sc1")
    A("v_min_u32 v1, 1, v0")
    A("v_lshlrev_b32 v1, 31, v1")
    A("s_waitcnt vmcnt(0)")
    A("s_barrier")
    A(f"buffer_store_dword v5, v1, {dbg}, 0 offen sc1")
    A("s_branch L_aux_1")
    A("L_aux_0:")
    A(f"s_mov_b32 s{S_ZF}, 0")
    A(f"s_cmp_lg_u32 s{S_WAVE}, 3")
    A("s_cbranch_scc1 L_aux_1")
    A(f"s_cmp_gt_u32 s{S_U}, {ZTARGET}")
    A("s_cbranch_scc1 L_aux_1")
    A(f"s_mov_b32 s{S_ZF}, 1")
    A("v_lshlrev_b32 v1, 4, v2")
    A(f"s_lshl_b32 s{S_T + 2}, s{S_U}, 11")
    A(f"s_add_u32 s{S_T + 2}, s{S_T + 2}, {CNT - 2048}")
    A(f"buffer_store_dwordx4 {v(GZ, 4)}, v1, {ws}, s{S_T + 2} offen sc1")
    A(f"buffer_store_dwordx4 {v(GZ, 4)}, v1, {ws}, s{S_T + 2} offen offset:1024 sc1")
    A("s_waitcnt vmcnt(0)")
    A("s_mov_b64 exec, 1")
    A(f"buffer_atomic_add v5, off, {dbg}, 0 offset:128 sc1")
    A("s_mov_b64 exec, -1")
    A("L_aux_1:")
    if CFG["sx"]:
        A(f"s_and_b32 s{S_T + 2}, s{S_U}, 7")
        A(f"s_mul_i32 s{S_T + 2}, s{S_T + 2}, 9")
        A(f"s_lshr_b32 s{S_U}, s{S_U}, 3")
        A(f"s_add_u32 s{S_U}, s{S_U}, s{S_T + 2}")
    srd(A, S_W, S_P + 20, W_BYTES)
    A(f"s_lshl_b32 s{S_U + 2}, s{S_U}, 7")
    A(f"s_mul_i32 s{S_U + 3}, s{S_WAVE}, {32 * 9216}")
    A(f"s_add_u32 s{S_U + 2}, s{S_U + 2}, s{S_U + 3}")
    A(f"s_mov_b32 s{S_U + 1}, 9216")
    A(f"s_mov_b32 s{S_U + 6}, {8 * 9216}")
    A(f"s_mov_b32 s{S_U + 7}, {104 * 9216}")
    A(f"s_lshl_b32 s{S_U + 4}, s{S_WAVE}, 12")
    shuf_addr(A, S_U + 4)
    for n in range(4):
        if n and n == CFG["w1s"]:
            A(f"s_cmp_eq_u32 s{S_ZF}, 1")
            A("s_cbranch_scc1 L_aux_go")
            A("s_waitcnt vmcnt(0)")
            A("L_aux_go:")
        shuf_dma(A, 16384 * n)
    A(f"s_cmp_ge_u32 s{S_WAVE}, 2")
    A("s_cbranch_scc1 L_aux_a")
    shuf_dma(A, 65536)
    A("L_aux_a:")
    A(f"s_mul_i32 s{S_U + 3}, s{S_U}, 73728")
    A(f"s_lshl_b32 s{S_U + 5}, s{S_WAVE}, 10")
    A(f"s_add_u32 s{S_U + 3}, s{S_U + 3}, s{S_U + 5}")
    A(f"s_add_u32 s{S_U + 3}, s{S_U + 3}, {W1S}")
    for i in range(16):
        A(f"v_mov_b32 v{SF + 64 + i}, 0")
    for i in range(4):
        A(f"v_mov_b32 v{4 + i}, {ONES}")
    for n in range(4):
        if n >= pre:
            A(f"s_waitcnt vmcnt({4 * (3 - n)})")
        shuf_read(A, SF + 16 * n, 16384 * n)
        A("s_waitcnt lgkmcnt(0)")
    for c in range(4):
        A(f"v_add_u32 v{SH + c}, 65536, v{SH + c}")
    A(f"s_cmp_ge_u32 s{S_WAVE}, 2")
    A("s_cbranch_scc1 L_aux_b")
    shuf_read(A, SF + 64, 0)
    A("s_waitcnt lgkmcnt(0)")
    A("L_aux_b:")
    stamp(A, 3)
    for n in range(5):
        for c in range(4):
            A(mf(8 + 4 * c, 4, SF + 16 * n + 4 * c, "0" if n == 0 else 8 + 4 * c))
    A("v_and_b32 v1, 15, v2")
    A("v_lshlrev_b32 v1, 4, v1")
    A(f"v_add_u32 v1, {RED}, v1")
    A(f"s_lshl_b32 s{S_U + 5}, s{S_WAVE}, 8")
    A(f"v_add_u32 v3, s{S_U + 5}, v1")
    for c in range(4):
        A(f"v_mov_b32 v{24 + c}, v{8 + 4 * c}")
    A("ds_write_b128 v3, v[24:27]")
    A(f"s_mov_b32 s{S_U + 6}, 0x00003f80")
    A(f"s_mov_b32 s{S_U + 7}, 0x3f800000")
    A("s_waitcnt lgkmcnt(0)")
    A("s_barrier")
    for w in range(4):
        A(f"ds_read_b128 {v(8 + 4 * w, 4)}, v1 offset:{256 * w}")
    A("s_waitcnt lgkmcnt(0)")
    for w in range(1, 4):
        for h in range(2):
            A(f"v_pk_add_f32 {v(8 + 2 * h, 2)}, {v(8 + 2 * h, 2)}, {v(8 + 4 * w + 2 * h, 2)}")
    for c in range(4):
        A(f"v_mul_f32 v{8 + c}, {INV576 | 0x80000000}, v{8 + c}")
    for n in range(5):
        if n == 4:
            A(f"s_cmp_ge_u32 s{S_WAVE}, 2")
            A("s_cbranch_scc1 L_front_end")
        for c in range(4):
            t, f = 32 + 8 * (c & 1), SF + 16 * n + 4 * c
            for e in range(8):
                A(f"v_dot2_f32_bf16 v{t + e}, v{f + (e >> 1)}, s{S_U + 6 + (e & 1)}, v{8 + c}")
            A(f"s_add_u32 s{S_U + 5}, s{S_U + 3}, {c * 18432 + 4096 * n}")
            for k in range(4):
                A(f"v_cvt_pk_bf16_f32 v{f + k}, v{t + 2 * k}, v{t + 2 * k + 1}")
            A(f"buffer_store_dwordx4 {v(f, 4)}, v{SV + 1}, {ws}, s{S_U + 5} offen sc1")
    A("s_branch L_front_end")
    A("L_aux_st:")
    aux_stats(A)


def code_prefetch(A):
    lo = CFG["cpf"] - 1
    A(f"s_sub_u32 s{S_T + 4}, s2, {lo}")
    A(f"s_cmp_ge_u32 s{S_T + 4}, 16")
    A("s_cbranch_scc1 L_cpf")
    A(f"s_getpc_b64 s[{S_T + 2}:{S_T + 3}]")
    A("L_cpf_pc:")
    A(f"s_lshr_b32 s{S_T + 4}, s{S_T + 4}, 3")
    A(f"s_lshl_b32 s{S_T + 4}, s{S_T + 4}, 15")
    A(f"v_lshl_add_u32 v96, v0, 7, s{S_T + 4}")
    A("v_min_u32 v96, L_code_end-L_cpf_pc-4, v96")
    A(f"v_add_co_u32 v96, vcc, s{S_T + 2}, v96")
    A(f"v_mov_b32 v97, s{S_T + 3}")
    A("v_addc_co_u32 v97, vcc, 0, v97, vcc")
    A("global_load_dword v98, v[96:97], off")
    A("L_cpf:")


def front(A, name):
    del SLOW[:]
    kernel_head(A, name)
    A("L_code_begin:")
    A("s_cmp_ge_u32 s2, 256")
    A("s_cbranch_scc1 L_exit")
    stamp(A, 0)
    prof_clear(A)
    A(f"s_load_dwordx16 s[{S_P}:{S_P + 15}], s[0:1], 0")
    A(f"s_load_dwordx8 s[{S_P + 16}:{S_P + 23}], s[0:1], 64")
    A(f"s_load_dwordx4 s[{S_P + 24}:{S_P + 27}], s[0:1], 96")
    A(f"s_load_dwordx2 s[{S_P + 28}:{S_P + 29}], s[0:1], 112")
    if CFG["cpf"]:
        code_prefetch(A)
    A("v_lshrrev_b32 v1, 6, v0")
    A(f"v_readfirstlane_b32 s{S_WAVE}, v1")
    A("v_and_b32 v2, 63, v0")
    for i in range(4):
        A(f"v_mov_b32 v{GZ + i}, 0")
    A(f"s_mov_b32 s{S_SP}, 200000")
    A(f"s_and_b32 s{S_CW}, s2, 7")
    A(f"s_mul_i32 s{S_CW}, s{S_CW}, 18")
    A(f"s_lshr_b32 s{S_T}, s2, 3")
    A(f"s_add_u32 s{S_CW}, s{S_CW}, s{S_T}")
    A(f"s_lshl_b32 s{S_CH}, s{S_CW}, 2")
    A(f"s_add_u32 s{S_CH}, s{S_CH}, s{S_WAVE}")
    A(f"s_lshl_b32 s{S_U + 8}, s{S_CW}, 3")
    A(f"s_add_u32 s{S_U + 9}, s{S_U + 8}, 4608")
    A(f"v_mul_u32_u24 v{GA}, 9216, v0")
    A(f"v_lshlrev_b32 v{GA + 1}, 6, v0")
    A(f"v_add_u32 v{GA + 1}, {ST}, v{GA + 1}")
    A("s_waitcnt lgkmcnt(0)")
    srd(A, S_X, S_P, X_BYTES)
    srd(A, S_WS, S_P + 28, WS_END)
    srd(A, S_DBG, S_P + 26, 256)
    A("s_cmp_ge_u32 s2, 144")
    A("s_cbranch_scc1 L_aux")
    A(f"s_load_dwordx2 s[82:83], s[{S_P + 16}:{S_P + 17}], s{S_U + 8}")
    kgen_issue(A)
    A("s_barrier")
    if CFG["pf"]:
        A(f"s_lshr_b32 s{S_T}, s2, 3")
        A(f"s_mul_i32 s{S_T}, s{S_T}, {128 * 1152}")
        A(f"s_and_b32 s{S_T + 1}, s2, 7")
        A(f"s_mul_i32 s{S_T + 1}, s{S_T + 1}, 144")
        A(f"s_add_u32 s{S_T}, s{S_T}, s{S_T + 1}")
        A("v_lshrrev_b32 v1, 1, v0")
        A("v_mul_u32_u24 v1, 1152, v1")
        A("v_and_b32 v3, 1, v0")
        A("v_mul_u32_u24 v3, 140, v3")
        A(f"v_add3_u32 v1, v1, v3, s{S_T}")
        A(f"buffer_load_dword v{GS}, v1, {xs}, 0 offen")
    g = [gather(i) for i in range(8)]
    A.ext(g[:CFG["g0"]])
    del g[:CFG["g0"]]
    conv_setup(A, g if CFG["gs"] > 1 else [])
    if CFG["gs"] > 0:
        A(g.pop(0))
    stamp(A, 1)
    A(f"s_waitcnt vmcnt({8 - len(g) + CFG['pf']})")
    kgen_valu(A, g)
    stamp(A, 2)
    kgen_contract(A, g)
    stamp(A, 3)
    A("s_waitcnt vmcnt(4)")
    A.ext(normalise1())
    A("s_waitcnt vmcnt(0)")
    stamp(A, 5)
    chk = [f"v_min_u32 v1, v{GS}, v{GS + 2}", f"v_min3_u32 v1, v1, v{GS + 4}, v{GS + 6}",
           f"v_min3_u32 v1, v1, v{GS + 8}, v{GS + 10}", f"v_min3_u32 v1, v1, v{GS + 12}, v{GS + 14}",
           "v_cmp_eq_u32 vcc, 0, v1"]
    A.ext(chk)
    A("s_cbranch_vccnz L_st_slow")
    A("L_st_back:")
    SLOW.append(["L_st_slow:", f"s_cmp_eq_u32 s{S_SP}, 0", "s_cbranch_scc1 L_st_back", f"s_sub_u32 s{S_SP}, s{S_SP}, 1",
                 "s_sleep 4"] + STLOAD + ["s_waitcnt vmcnt(0)"] + chk + ["s_cbranch_vccnz L_st_slow", "s_branch L_st_back"])
    normalise2(A)
    A("s_waitcnt lgkmcnt(0)")
    A("s_barrier")
    stamp(A, 4)
    conv_main(A)
    stamp(A, 6)
    A("L_front_end:")
    A(zf_scalar(128))
    late_w2_issue(A)


def out_of_line():
    B = Asm()
    B("L_aux:")
    aux_path(B)
    for code in SLOW:
        B.ext(code)
    return B.lines
```

```python
from common import *

HB = 73728
STB = 147456
K3_LDS = STB + 512

S_WAVE, S_J, S_TT = 3, 4, 5
S_WS, S_OUT = 8, 12
S_CUR, S_NXT, S_W2B, S_N, S_LP = 16, 17, 18, 19, 20
S_PO, S_FO, S_GL, S_GC, S_RO = 21, 22, 23, 24, 25
S_G8F, S_G8D, S_G8O, S_OO = 26, 27, 28, 29
S_FAC, S_SP = 30, 31
S_T = 72
S_MA, S_MC, S_MD = 74, 76, 78

VW = 4
VF0 = 9
HA = 10
HW = 14
HR = 18
RS = 20
VONE, VFL, VG8, VO = 24, 25, 26, 27
TP = 28
ACC, FIN = 32, 48
PK = 64
LAND = 72
SUM = 80
SQ, SM = 96, 100
UT = 104
ACTV = 108
WR = 140
VPO, VRI, VFI = 212, 213, 214
V4, VG8O = 215, 216
UX = 220
LND2 = 236
NV = 244

STEPPROF = False
CFG = dict(LA1=18, LA2=18, ep=8, epr=2, fs=72 + 16, fl=72 + 68, ck=144 + 60, ac=216 + 52, hs=13, bar1=1, bar2=1, nsent=2, t8a=20, t8b=40, t8c=28, t8d=70, ost=2, LA3=10, d0=12)


def act(m, ks, n=4, o=0):
    i = 4 * ks + m
    return a(4 * i + o, n) if i < 64 else v(ACTV + 4 * (i - 64) + o, n)


def ffn(A, p_out, cleared, late_read, late_store, late_prev):
    cfg = CFG
    OST = ["", " sc1", " nt", " sc0 sc1", " sc1 nt"][cfg["ost"]]
    ws, so = f"s[{S_WS}:{S_WS + 3}]", f"s[{S_OUT}:{S_OUT + 3}]"
    A(f"s_lshl_b32 s{S_J}, s2, 1")
    A(f"s_bfe_u32 s{S_T}, s2, 0x10003")
    A(f"s_or_b32 s{S_J}, s{S_J}, s{S_T}")
    A(f"s_and_b32 s{S_J}, s{S_J}, 7")
    A(f"s_lshr_b32 s{S_TT}, s2, 4")
    A(f"s_and_b32 s{S_T}, s2, 4")
    A(f"s_lshl_b32 s{S_T}, s{S_T}, 2")
    A(f"s_or_b32 s{S_TT}, s{S_TT}, s{S_T}")
    A(f"v_lshlrev_b32 v{VW}, 4, v2")
    for i in range(1, 5):
        A(f"v_add_u32 v{VW + i}, {4096 * i}, v{VW}")
    A(f"s_mul_i32 s{S_T}, s{S_TT}, 73728")
    A(f"s_lshl_b32 s{S_T + 1}, s{S_WAVE}, 10")
    A(f"s_add_u32 s{S_T}, s{S_T}, s{S_T + 1}")
    A(f"s_mul_i32 s{S_NXT}, s{S_J}, {9 * 73728}")
    A(f"s_mul_i32 s{S_T + 2}, s{S_WAVE}, 18432")
    A(f"s_add_u32 s{S_NXT}, s{S_NXT}, s{S_T + 2}")
    A(f"s_add_u32 s{S_W2B}, s{S_NXT}, {W2S}")
    A(f"s_add_u32 s{S_NXT}, s{S_NXT}, {W1S}")
    A(f"s_add_u32 s{S_T}, s{S_T}, s{S_T + 1}")
    A(f"s_add_u32 s{S_N}, s{S_T}, {HT}")
    vm, lg = Cnt("vmcnt", 63), Cnt("lgkmcnt", 15)
    nx = [0]

    def wload(cur_step):
        f = nx[0]
        nx[0] += 1
        st, ks = divmod(f, 18)
        vm.issue(("w", f))
        sr = S_CUR if st == cur_step else S_NXT
        return f"buffer_load_dwordx4 {v(WR + 4 * ks, 4)}, v{VW + ks // 4}, {ws}, s{sr} offen offset:{1024 * (ks % 4)} sc1"
    setup = Asm()
    B = setup
    srd(B, S_OUT, p_out, X_BYTES)
    B(f"v_lshrrev_b32 v{TP}, 2, v2")
    B(f"v_bfe_u32 v{TP + 1}, v2, 3, 2")
    B(f"v_xor_b32 v{TP + 1}, s{S_WAVE}, v{TP + 1}")
    B(f"v_and_b32 v{TP + 2}, 3, v2")
    B(f"v_lshlrev_b32 v{TP + 2}, 3, v{TP + 2}")
    B(f"v_lshl_add_u32 v{TP + 2}, v{TP}, 7, v{TP + 2}")
    B(f"v_lshl_add_u32 v{HA}, v{TP + 1}, 5, v{TP + 2}")
    for m in range(1, 4):
        B(f"v_xor_b32 v{HA + m}, {32 * m}, v{HA}")
    B(f"v_add_u32 v{HR}, {HB}, v{VW}")
    B(f"v_add_u32 v{HR + 1}, {HB + 36864}, v{VW}")
    B(f"s_lshr_b32 s{S_T}, s{S_WAVE}, 1")
    B(f"s_lshl_b32 s{S_T}, s{S_T}, 12")
    B(f"s_and_b32 s{S_T + 2}, s{S_WAVE}, 1")
    B(f"s_lshl_b32 s{S_T + 2}, s{S_T + 2}, 3")
    B(f"s_add_u32 s{S_T}, s{S_T}, s{S_T + 2}")
    for m in range(4):
        B(f"s_xor_b32 s{S_T + 2}, s{S_T + 1}, {1024 * m}")
        B(f"s_add_u32 s{S_T + 2}, s{S_T + 2}, s{S_T}")
        B(f"v_add_u32 v{HW + m}, s{S_T + 2}, v{HR}")
    B(f"s_mul_i32 s{S_T}, s{S_TT}, {9 * 65536}")
    B(f"s_add_u32 s{S_T}, s{S_T}, {PP}")
    B(f"s_lshl_b32 s{S_G8D}, s{S_J}, 10")
    B(f"s_add_u32 s{S_G8D}, s{S_G8D}, s{S_T}")
    B(f"s_lshl_b32 s{S_T + 2}, s{S_WAVE}, 8")
    B(f"s_add_u32 s{S_G8D}, s{S_G8D}, s{S_T + 2}")
    B(f"s_lshl_b32 s{S_T + 2}, s{S_WAVE}, 11")
    B(f"s_add_u32 s{S_T}, s{S_T}, s{S_T + 2}")
    B(f"s_lshl_b32 s{S_RO}, s{S_J}, 13")
    B(f"s_add_u32 s{S_T + 2}, s{S_T}, s{S_RO}")
    B(f"v_add_u32 v{VPO}, s{S_T + 2}, v{VW}")
    B(f"s_lshl_b32 s{S_PO}, s{S_J}, 16")
    B(f"s_add_u32 s{S_T + 2}, s{S_T}, s{S_PO}")
    B(f"v_add_u32 v{VRI}, s{S_T + 2}, v{VW}")
    B(f"s_lshl_b32 s{S_T}, s{S_TT}, 10")
    B(f"s_add_u32 s{S_T}, s{S_T}, {FL}")
    B(f"s_lshr_b32 s{S_T + 2}, s{S_J}, 1")
    B(f"s_lshl_b32 s{S_T + 2}, s{S_T + 2}, 2")
    B(f"s_add_u32 s{S_G8F}, s{S_T}, s{S_T + 2}")
    B(f"s_lshl_b32 s{S_T + 2}, s{S_WAVE}, 2")
    B(f"s_add_u32 s{S_T}, s{S_T}, s{S_T + 2}")
    B(f"s_lshl_b32 s{S_FO}, s{S_J}, 7")
    B(f"s_add_u32 s{S_T + 2}, s{S_T}, s{S_FO}")
    B(f"v_min_u32 v{VF0}, 1, v2")
    B(f"v_lshl_add_u32 v{VFI}, v{VF0}, 31, s{S_T + 2}")
    B(f"s_lshl_b32 s{S_GL}, s{S_J}, 4")
    B(f"s_add_u32 s{S_T + 2}, s{S_T}, s{S_GL}")
    B(f"v_lshl_add_u32 v{VF0}, v{VF0}, 31, s{S_T + 2}")
    B(f"v_lshlrev_b32 v{V4}, 2, v2")
    B(f"v_bfe_u32 v{VG8O}, v2, 1, 1")
    B(f"v_lshl_add_u32 v{VG8O}, v{VG8O}, 4, v{TP}")
    B(f"v_mul_u32_u24 v{VG8O}, 1152, v{VG8O}")
    B(f"v_and_b32 v{TP + 3}, 1, v2")
    B(f"v_lshl_add_u32 v{VG8O}, v{TP + 3}, 2, v{VG8O}")
    B(f"s_mul_i32 s{S_OO}, s{S_TT}, 73728")
    B(f"s_and_b32 s{S_T}, s{S_J}, 1")
    B(f"s_mul_i32 s{S_T}, s{S_T}, 36864")
    B(f"s_add_u32 s{S_G8O}, s{S_OO}, s{S_T}")
    B(f"s_lshr_b32 s{S_T}, s{S_J}, 1")
    B(f"s_lshl_b32 s{S_T}, s{S_T}, 2")
    B(f"s_add_u32 s{S_T}, s{S_T}, s{S_WAVE}")
    B(f"s_lshl_b32 s{S_T}, s{S_T}, 3")
    B(f"s_add_u32 s{S_G8O}, s{S_G8O}, s{S_T}")
    B(f"s_lshl_b32 s{S_T}, s{S_J}, 7")
    B(f"s_add_u32 s{S_OO}, s{S_OO}, s{S_T}")
    B(f"s_lshl_b32 s{S_T}, s{S_WAVE}, 5")
    B(f"s_add_u32 s{S_OO}, s{S_OO}, s{S_T}")
    B(f"v_and_b32 v{VO}, 15, v2")
    B(f"v_mul_u32_u24 v{VO}, 1152, v{VO}")
    B(f"v_lshrrev_b32 v{TP + 3}, 4, v2")
    B(f"v_lshl_add_u32 v{VO}, v{TP + 3}, 3, v{VO}")
    B(f"v_lshrrev_b32 v{TP + 3}, 3, v2")
    B(f"v_min_u32 v{TP + 3}, 1, v{TP + 3}")
    B(f"v_mul_u32_u24 v{VG8}, 144, v2")
    B(f"v_lshl_add_u32 v{VG8}, v{TP + 3}, 31, v{VG8}")
    B(f"v_mov_b32 v{VONE}, 1")
    B(f"s_cmp_eq_u32 s{S_J}, 0")
    B(f"s_cselect_b32 s{S_FAC}, 1.0, 0")
    for i in range(4):
        B(f"v_mov_b32 v{PK + i}, {ONES}")
    B(f"s_mov_b32 s{S_MA}, 0xaaaaaaaa")
    B(f"s_mov_b32 s{S_MA + 1}, 0xaaaaaaaa")
    B(f"s_mov_b32 s{S_MC}, 0xcccccccc")
    B(f"s_mov_b32 s{S_MC + 1}, 0xcccccccc")
    B(f"s_mov_b32 s{S_MD}, 0x00f0000f")
    B(f"s_mov_b32 s{S_MD + 1}, 0xf0000f00")
    A.ext(setup.lines)
    A(f"s_mov_b32 s{S_SP}, 400000")
    A(f"s_and_b32 s{S_T}, s2, 7")
    A(f"s_lshl_b32 s{S_T}, s{S_T}, 7")
    A(f"s_add_u32 s{S_T}, s{S_T}, {CNT}")
    A(f"v_lshl_add_u32 v{UX}, v2, 10, s{S_T}")
    A(f"s_add_u32 s{S_T}, s{S_T}, {CN3 - CNT}")
    A(f"v_min_u32 v{UX + 2}, 1, v0")
    A(f"v_lshl_add_u32 v{UX + 2}, v{UX + 2}, 31, s{S_T}")
    A(f"v_and_b32 v{UX + 3}, 7, v2")
    A(f"v_lshlrev_b32 v{UX + 3}, 7, v{UX + 3}")
    A(f"v_add_u32 v{UX + 3}, {CN3}, v{UX + 3}")
    A(f"s_bfe_u32 s{S_T}, s2, 0x40003")
    A(f"s_lshl_b32 s{S_T}, s{S_T}, 10")
    A(f"s_add_u32 s{S_T}, s{S_T}, {CNT}")
    A(f"v_lshl_add_u32 v{UX + 1}, v2, 7, s{S_T}")
    NS = cfg["nsent"]
    for i in range(4):
        A(f"v_mov_b32 v{LAND + i}, -1")

    def fill(B, vo=VPO):
        for b in range(8 - NS, 8):
            B(f"s_add_u32 s{S_GC}, s{S_PO}, {65536 * b}")
            B(f"s_and_b32 s{S_GC}, s{S_GC}, 0x7ffff")
            for h in range(2):
                B(f"buffer_store_dwordx4 {v(LAND, 4)}, v{vo}, {ws}, s{S_GC} offen offset:{1024 * h} sc1")
    A("s_waitcnt vmcnt(0)")
    stamp(A, 1, 1)
    late_read(A)
    A("s_barrier")
    A(f"s_cmp_lg_u32 s{S_WAVE}, 0")
    A("s_cbranch_scc1 L_s2_other")
    cleared(A, VFL, S_SP)
    A("s_mov_b64 exec, 0xffff")
    A(f"buffer_atomic_add v{VONE}, v{UX}, {ws}, 0 offen sc1")
    A("s_mov_b64 exec, 0xff")
    A("L_s2_poll:")
    A(f"v_mov_b32 v{VFL}, 0")
    A(f"buffer_atomic_add v{VFL}, v{UX + 1}, {ws}, 0 offen sc0 sc1")
    A(f"s_sub_u32 s{S_SP}, s{S_SP}, 1")
    A("s_waitcnt vmcnt(0)")
    A(f"v_cmp_ne_u32 vcc, 32, v{VFL}")
    A("s_cbranch_vccz L_s2_ok")
    A(f"s_cmp_lg_u32 s{S_SP}, 0")
    A("s_cbranch_scc1 L_s2_poll")
    A("L_s2_ok:")
    A("s_mov_b64 exec, -1")
    A("s_branch L_s2_done")
    A("L_s2_other:")
    A("s_waitcnt lgkmcnt(0)")
    late_store(A, VW)
    fill(A)
    A(f"s_cmp_eq_u32 s{S_WAVE}, 3")
    A("s_cbranch_scc1 L_s2_done")
    A(f"s_cmp_eq_u32 s{S_WAVE}, 2")
    A("s_cbranch_scc1 L_s2_w2")
    late_prev(A)
    late_read(A)
    A("s_waitcnt lgkmcnt(0)")
    late_store(A, VW)
    A("s_branch L_s2_done")
    A("L_s2_w2:")
    A(f"v_subrev_u32 v{UT}, 0x1000, v{VPO}")
    fill(A, UT)
    A("L_s2_done:")
    A("s_barrier")
    stamp(A, 2, 1)
    A(f"s_lshl_b32 s{S_T + 1}, s{S_WAVE}, 11")

    def hdma(p):
        return [f"s_add_u32 m0, s{S_T + 1}, {8192 * p}", f"s_add_u32 s{S_T}, s{S_N}, {8192 * p}",
                ("vm", None, f"buffer_load_dwordx4 v{VW}, {ws}, s{S_T} offen sc1 lds"),
                ("vm", ("hd", p), f"buffer_load_dwordx4 v{VW}, {ws}, s{S_T} offen offset:1024 sc1 lds")]

    def hread(ks):
        out = []
        if ks == 16:
            out += [f"v_add_u32 v{HA + m}, 65536, v{HA + m}" for m in range(4)]
        for m in range(4):
            for h in range(2):
                off = (4096 * ks + 2048 * h) & 0xffff
                out.append(("lg", ("h", ks), f"ds_read_b64_tr_b16 {act(m, ks, 2, 2 * h)}, v{HA + m} offset:{off}"))
        return out

    def Hread(ks):
        r, off = (HR, 4096 * ks) if ks < 9 else (HR + 1, 4096 * (ks - 9))
        return [("lg", ("H", ks), f"ds_read_b128 {act(m, ks)}, v{r} offset:{off + 1024 * m}") for m in range(4)]

    def ep1():
        out = []
        for m in range(4):
            out += [f"v_cvt_pk_bf16_f32 v{PK + 2 * m + h}, v{FIN + 4 * m + 2 * h}, v{FIN + 4 * m + 2 * h + 1}" for h in range(2)]
            out += [f"v_pk_max_i16 v{PK + 2 * m + h}, v{PK + 2 * m + h}, 0" for h in range(2)]
            out.append(("lg", "Hw", f"ds_write_b64 v{HW + m}, {v(PK + 2 * m, 2)}"))
            out.append(f"v_add_u32 v{HW + m}, 8192, v{HW + m}")
        return out

    def hres_read():
        return [("lg", "hres", f"ds_read_b64_tr_b16 {v(LAND + 2 * m, 2)}, v{HA + m}") for m in range(4)]

    def unpack_to_sum():
        out = [("lgw", "hres")]
        for i in range(8):
            out += [f"v_lshlrev_b32 v{SUM + 2 * i}, 16, v{LAND + i}", f"v_and_b32 v{SUM + 2 * i + 1}, 0xffff0000, v{LAND + i}"]
        return out

    def scale_pack(m, add):
        out = []
        for i in range(4):
            r = FIN + 4 * m + i
            out.append(f"v_fma_f32 v{r}, v{r}, v{RS + m}, v{SUM + 4 * m + i}" if add else f"v_mul_f32 v{r}, v{r}, v{RS + m}")
        return out + [f"v_cvt_pk_bf16_f32 v{PK + 2 * m + h}, v{FIN + 4 * m + 2 * h}, v{FIN + 4 * m + 2 * h + 1}" for h in range(2)]

    def rot(sr, delta, mask):
        op = "s_add_u32" if delta > 0 else "s_sub_u32"
        return [f"{op} s{sr}, s{sr}, {abs(delta)}", f"s_and_b32 s{sr}, s{sr}, {mask}"]

    def ep2(b):
        out = [f"s_mov_b32 s{S_T + 2}, {8 * 65536}"] if b == 0 else rot(S_PO, 65536, 0x7ffff)
        sr = S_T + 2 if b == 0 else S_PO
        for m in range(4):
            out += scale_pack(m, b == 0)
            if m & 1:
                out.append(("vm", ("pst", b), f"buffer_store_dwordx4 {v(PK + 4 * (m >> 1), 4)}, v{VPO}, {ws}, s{sr} offen offset:{1024 * (m >> 1)} sc1"))
        return out

    def flag_st(b):
        return ([] if b == 0 else rot(S_FO, 128, 0x3ff)) + \
            [("vmw", ("pst", b)), ("vm", None, f"buffer_atomic_add v{VONE}, v{VF0}, {ws}, s{S_FO} offen sc1")]
    slow = []

    def poll(b):
        ad = f"v{VG8}, {ws}, s{S_G8F}" if b == 0 else f"v{VFI}, {ws}, s{S_GL}"
        return f"buffer_atomic_add v{VFL}, {ad} offen sc0 sc1"

    def flag_ld(b):
        return ([] if b == 0 else rot(S_GL, -16, 0x7f)) + [f"v_mov_b32 v{VFL}, 0", ("vm", ("fl", b), poll(b))]

    def check(b, tag):
        test = [f"v_cmp_ne_u32 vcc, 1, v{VFL}", f"s_and_b32 s{S_GC}, vcc_lo, {0xff if b == 0 else 1}"]
        code = [f"L_k3_slow{tag}:", f"s_cmp_eq_u32 s{S_SP}, 0", f"s_cbranch_scc1 L_k3_back{tag}", f"s_sub_u32 s{S_SP}, s{S_SP}, 1",
                f"v_mov_b32 v{VFL}, 0", poll(b), "s_waitcnt vmcnt(0)"] + test + \
               [f"s_cbranch_scc1 L_k3_slow{tag}", f"s_branch L_k3_back{tag}"]
        slow.append(code)
        return [("vmw", ("fl", b)), test[0], ("seq", [test[1], f"s_cbranch_scc1 L_k3_slow{tag}", f"L_k3_back{tag}:"])]

    def data_ld(b, dst=LAND):
        if b == 0:
            out = []
            for sj in range(8):
                out += [f"s_add_u32 s{S_T + 3}, s{S_G8D}, {8 * 65536 + sj * 8192}",
                        ("vm", ("dat", b), f"buffer_load_dword v{dst + sj}, v{V4}, {ws}, s{S_T + 3} offen sc1")]
            return out
        return rot(S_RO, -8192, 0xffff) + \
            [("vm", ("dat", b), f"buffer_load_dwordx4 {v(dst + 4 * h, 4)}, v{VRI}, {ws}, s{S_RO} offen offset:{1024 * h} sc1") for h in range(2)]

    def accum(b, src=LAND):
        out = [("vmw", ("dat", b))]
        for i in range(8):
            out += [f"v_lshlrev_b32 v{UX + 2 * i}, 16, v{src + i}", f"v_and_b32 v{UX + 2 * i + 1}, 0xffff0000, v{src + i}"]
        if b == 0:
            for w in (8, 4, 2):
                out += [f"v_add_f32 v{UX + i}, v{UX + i}, v{UX + w + i}" for i in range(w)]
            return out + [f"v_cvt_pk_bf16_f32 v{SQ}, v{UX}, v{UX + 1}",
                          ("vm", None, f"buffer_store_dword v{SQ}, v{VG8O}, {so}, s{S_G8O} offen offset:1024{OST}")]
        return out + [f"v_add_f32 v{SUM + i}, v{SUM + i}, v{UX + i}" for i in range(16)]

    def stats_fin():
        return [f"v_cndmask_b32 v{SQ}, v{SQ}, v{SQ + 1}, s[{S_MA}:{S_MA + 1}]",
                f"v_cndmask_b32 v{SQ + 2}, v{SQ + 2}, v{SQ + 3}, s[{S_MA}:{S_MA + 1}]",
                f"v_mul_f32 v{SM}, {INV576}, v{SM}",
                f"v_cndmask_b32 v{SQ}, v{SQ}, v{SQ + 2}, s[{S_MC}:{S_MC + 1}]",
                f"v_and_b32 v{TP}, 15, v2", f"v_mul_f32 v{SQ}, {INV576}, v{SQ}",
                f"v_lshlrev_b32 v{TP}, 2, v{TP}", f"v_fma_f32 v{SQ}, -v{SM}, v{SM}, v{SQ}",
                f"v_add_u32 v{TP}, {STB}, v{TP}", f"v_max_f32 v{SQ}, 0, v{SQ}",
                f"s_lshl_b32 s{S_T}, s{S_WAVE}, 6", f"v_add_f32 v{SQ}, {EPS}, v{SQ}",
                f"v_add_u32 v{TP + 1}, s{S_T}, v{TP}", f"v_rsq_f32 v{SQ}, v{SQ}",
                f"v_add_u32 v{TP + 2}, 256, v{TP + 1}",
                f"v_cndmask_b32 v{TP + 1}, v{TP + 2}, v{TP + 1}, s[{S_MD}:{S_MD + 1}]",
                ("lg", "st", f"ds_write_b32 v{TP + 1}, v{SQ}")]

    def put(out, it):
        if isinstance(it, str):
            out.append(it)
        elif it[0] == "lg":
            lg.issue(it[1])
            out.append(it[2])
        elif it[0] == "vm":
            vm.issue(it[1])
            out.append(it[2])
        elif it[0] == "lgw":
            out.extend(lg.wait(it[1]))
        elif it[0] == "vmw":
            out.extend(vm.wait(it[1]))
        elif it[0] == "w":
            out.append(wload(it[1]))
        elif it[0] == "seq":
            out.extend(it[1])
        elif it[0] == "bar":
            out.extend(lg.wait(it[1]) if it[1] else [])
            out.append("s_barrier")

    def step(n, la, head=(), streams=(), pre=None, gram=False, prei=None):
        out, pre = [], pre or {}
        sts = [[st, rate, list(items)] for st, rate, items in streams]
        if STEPPROF:
            out.append(f"s_memtime s[{32 + 2 * n}:{33 + 2 * n}]")
        out.append(f"s_mov_b32 s{S_CUR}, s{S_NXT}")
        if (cfg["bar1"] and 1 <= n <= 7) or (cfg["bar2"] and n >= 10):
            out.append("s_barrier")
        for it in head:
            put(out, it)
        seen, left = set(), {m: 18 for m in range(4)}
        for p in range(9):
            f0 = 18 * n + 2 * p
            for it in pre.get(p, ()):
                put(out, it)
            out.extend(vm.wait(("w", f0 + 1), force=n > 0))
            ms = range(4) if p % 2 == 0 else range(3, -1, -1)
            seq = [(2 * p + (d if i % 2 == 0 else 1 - d), m) for i, m in enumerate(ms) for d in range(2)]
            for i, (ks, m) in enumerate(seq):
                for it in (prei or {}).get(8 * p + i, ()):
                    put(out, it)
                left[m] -= 1
                d = FIN if left[m] == 0 else ACC
                c = v(ACC + 4 * m, 4) if m in seen else "0"
                seen.add(m)
                out.append(f"v_mfma_f32_16x16x32_bf16 {v(d + 4 * m, 4)}, {v(WR + 4 * ks, 4)}, {act(m, ks)}, {c}")
                if la and i in (1, 3, 5, 7) and nx[0] < min(324, f0 + la - (1 if i < 5 else 0)):
                    out.append(wload(n))
                idx = 8 * p + i
                for stt in sts:
                    if idx >= stt[0]:
                        k = 0
                        while k < stt[1] and stt[2]:
                            it = stt[2].pop(0)
                            put(out, it)
                            if isinstance(it, str) or it[0] not in ("lgw", "vmw"):
                                k += 1
            if gram:
                gi = list(gram.get(p, ()))
                for k, (dst, x) in enumerate(((SQ, None), (SQ, None), (SM, v(PK, 4)), (SM, v(PK, 4)))):
                    ks = 2 * p + (k & 1)
                    out.append(f"v_mfma_f32_16x16x32_bf16 {v(dst, 4)}, {x or act(0, ks)}, {act(0, ks)}, {'0' if ks == 0 else v(dst, 4)}")
                    for it in gi[2 * k: 2 * k + 2 if k < 3 else None]:
                        put(out, it)
        for stt in sts:
            assert not stt[2], (n, stt)
        return out

    LA1, LA2, EP = cfg["LA1"], cfg["LA2"], cfg["ep"]
    nextw1 = [f"s_add_u32 s{S_NXT}, s{S_NXT}, 73728"]
    nextw2 = [f"s_add_u32 s{S_N}, s{S_N}, 1", f"s_and_b32 s{S_N}, s{S_N}, 7", f"s_mul_i32 s{S_T}, s{S_N}, 73728",
              f"s_add_u32 s{S_NXT}, s{S_W2B}, s{S_T}"]
    steps, pro = [], []
    groups = []
    for p in range(9):
        for m in (range(4) if p % 2 == 0 else range(3, -1, -1)):
            g = []
            if p == 8:
                g.append(f"v_add_u32 v{HA + m}, 65536, v{HA + m}")
            for ks in (2 * p, 2 * p + 1):
                for h in range(2):
                    off = (4096 * ks + 2048 * h) & 0xffff
                    g.append(("lg", ("h", len(groups)), f"ds_read_b64_tr_b16 {act(m, ks, 2, 2 * h)}, v{HA + m} offset:{off}"))
            groups.append(g)
    strm = [hdma(0)]
    for p in range(9):
        strm += ([hdma(p + 1)] if p < 8 else []) + [[("w", 0), ("w", 0)]]
    strm += [[("w", 0), ("w", 0)] for _ in range(8)]
    n0 = 3 + cfg["d0"] // 2
    A(f"s_mov_b32 s{S_CUR}, s{S_NXT}")
    for blk in strm[:n0]:
        for it in blk:
            put(pro, it)
    put(pro, ("vmw", ("hd", 0)))
    pro += ["s_barrier"] + stamp_item(3)
    for g in groups[:4]:
        for it in g:
            put(pro, it)
    A.ext(pro)
    gram, k = {}, n0
    for p in range(9):
        gram[p] = []
        for _ in range(2):
            if k < len(strm):
                isw = strm[k][0] == ("w", 0)
                nw = sum(2 for blk in strm[:k + 1] if blk[0] == ("w", 0))
                if isw and nw > 2 * p + 2 + 16:
                    break
                gram[p] += strm[k]
                k += 1
    steps.append(step(0, 0, head=nextw1, gram=gram,
                      streams=[(2 * q, 2 if q < 28 else 3, groups[q + 4]) for q in range(32)],
                      pre={p: [("vmw", ("w", 2 * p + 1)), "s_barrier"] for p in range(8)},
                      prei={2 * q: [("lgw", ("h", q))] for q in range(36)}))
    arr3 = [("vm", None, f"buffer_atomic_add v{VONE}, v{UX + 2}, {ws}, 0 offen sc1")]
    assert cfg["bar1"]
    steps.append(step(1, LA1, head=nextw1 + arr3, streams=[(EP, 1, ep1() + stats_fin())]))
    for n in range(2, 7):
        steps.append(step(n, LA1, head=nextw1, streams=[(EP, 1, ep1())]))
    ld3 = f"buffer_load_dword v{VFL}, v{UX + 3}, {ws}, 0 offen sc1"
    slow.append(["L_k3_slow3:", f"s_cmp_eq_u32 s{S_SP}, 0", "s_cbranch_scc1 L_k3_back3", f"s_sub_u32 s{S_SP}, s{S_SP}, 1",
                 "s_sleep 8", ld3, "s_waitcnt vmcnt(0)", f"v_cmp_ne_u32 vcc, 32, v{VFL}",
                 "s_cbranch_vccnz L_k3_slow3", "s_branch L_k3_back3"])
    chk3 = [("vmw", "c3"), f"v_cmp_ne_u32 vcc, 32, v{VFL}", ("seq", ["s_cbranch_vccnz L_k3_slow3", "L_k3_back3:"])]
    steps.append(step(7, LA1, head=nextw1 + [("vm", "c3", ld3)], streams=[(EP, 1, ep1()), (68, 1, chk3)]))
    hsl = {8: {}, 9: {}}
    for q in range(8):
        for k, it in enumerate(Hread(2 * q) + Hread(2 * q + 1)):
            g = 8 + cfg["hs"] * q + (k * cfg["hs"]) // 8
            hsl[8 + g // 72].setdefault(g % 72, []).append(it)
    hd = [f"s_add_u32 s{S_NXT}, s{S_W2B}, {8 * 73728}", f"s_mov_b32 s{S_N}, s{S_J}", f"s_mov_b32 s{S_SP}, 400000", ("bar", "Hw")]
    rsr = [("lg", "rs", f"ds_read_b32 v{RS + m}, v{TP} offset:{64 * m}") for m in range(4)]
    steps.append(step(8, LA1, head=hd, pre={7: [("bar", "Hw")]}, prei=hsl[8], streams=[(0, 1, rsr), (EP, 1, ep1())]))
    fixa = [f"s_lshl_b32 s{S_T + 1}, s{S_WAVE}, 5"] + [f"v_xor_b32 v{HA + m}, s{S_T + 1}, v{HA + m}" for m in range(4)]
    fixa += [f"s_lshl_b32 s{S_T + 1}, s{S_WAVE}, 11"] + [f"v_add_u32 v{HA + m}, s{S_T + 1}, v{HA + m}" for m in range(4)]
    scale = [f"v_mul_f32 v{SUM + i}, s{S_FAC}, v{SUM + i}" for i in range(16)]
    pre = {p: [("lgw", ("H", 2 * p + 1))] for p in range(9)}
    pre[5] = pre[5] + [("bar", "Hw")]
    own = [f"s_lshl_b32 s{S_T + 1}, s{S_J}, 13", f"s_sub_u32 s{S_T + 1}, s{S_T + 1}, 65536"]
    own += [f"v_add_u32 v{HA + m}, s{S_T + 1}, v{HA + m}" for m in range(4)]
    assert cfg["fl"] + 2 <= cfg["ck"] <= cfg["fl"] + 70 and cfg["ck"] + 10 <= cfg["ac"] <= cfg["ck"] + 64
    ev = {n: [] for n in range(9)}
    late = []
    for b in range(8 - NS):
        for kind in ("fs", "fl", "ck", "ac"):
            g = 72 * (b + 1) + cfg[kind]
            (ev[g // 72] if g // 72 <= 7 else late).append((g % 72 if g // 72 <= 7 else g, kind, b))

    def ev_items(kind, b, tag, dst=LAND):
        return {"fs": lambda: flag_st(b), "fl": lambda: flag_ld(b), "ck": lambda: check(b, tag) + data_ld(b, dst),
                "ac": lambda: accum(b, dst)}[kind]()
    for n in range(8):
        st = []
        if n == 0:
            st = [(0, 2, fixa + hres_read()), (EP, 1, ep1()), (40, 1, Hread(16) + Hread(17)), (48, 2, unpack_to_sum() + scale)]
        else:
            st = [(EP, cfg["epr"], ep2(n - 1) + (unpack_to_sum() if n == 1 else []))]
            if n == 1:
                st.insert(0, (0, 2, own + hres_read()))
        for idx, kind, b in sorted(ev[n]):
            st.append((idx, 2, ev_items(kind, b, "@")))
        body = step(9 + n, LA2 if n < 7 else cfg['LA3'], head=(stamp_item(4) if n == 0 else []) + nextw2, streams=st,
                    pre=pre if n == 0 else None, prei=hsl[9] if n == 0 else None)
        steps.append(body)
    late.sort()
    pend = {k: [b for _, kk, b in late if kk == k] for k in ("fs", "fl", "ck", "ac")}
    assert not pend["fs"] and not pend["fl"] and len(pend["ck"]) <= 1, pend
    land = {b: LAND for b in pend["ac"]}
    st = [(6, 2, ep2(7))]
    for b in pend["ck"]:
        land[b] = LND2
        st.append((cfg["t8a"], 2, ev_items("ck", b, f"t{b}", LND2)))
    acc8 = [it for b in pend["ac"] for it in accum(b, land[b])]
    st.append((cfg["t8c"], 2, acc8))

    def sent_ld(b, dst):
        return rot(S_RO, -8192, 0xffff) + [f"s_mov_b32 s{S_T + b - 4}, s{S_RO}"] + \
            [("vm", ("dat", b), f"buffer_load_dwordx4 {v(dst + 4 * h, 4)}, v{VRI}, {ws}, s{S_RO} offen offset:{1024 * h} sc1") for h in range(2)]

    def sent_chk(b, dst):
        test = [f"v_max3_u32 v{UT}, v{dst}, v{dst + 1}, v{dst + 2}", f"v_max3_u32 v{UT + 1}, v{dst + 3}, v{dst + 4}, v{dst + 5}",
                f"v_max3_u32 v{UT}, v{UT}, v{dst + 6}, v{dst + 7}", f"v_max_u32 v{UT}, v{UT}, v{UT + 1}", f"v_cmp_eq_u32 vcc, -1, v{UT}"]
        slow.append([f"L_k3_slowq{b}:", f"s_cmp_eq_u32 s{S_SP}, 0", f"s_cbranch_scc1 L_k3_backq{b}", f"s_sub_u32 s{S_SP}, s{S_SP}, 1"] +
                    [f"buffer_load_dwordx4 {v(dst + 4 * h, 4)}, v{VRI}, {ws}, s{S_T + b - 4} offen offset:{1024 * h} sc1" for h in range(2)] +
                    ["s_waitcnt vmcnt(0)"] + test + [f"s_cbranch_vccnz L_k3_slowq{b}", f"s_branch L_k3_backq{b}"])
        return [("vmw", ("dat", b))] + test + [("seq", [f"s_cbranch_vccnz L_k3_slowq{b}", f"L_k3_backq{b}:"])]
    tail_items = []
    for i, b in enumerate(range(8 - NS, 8)):
        land[b] = WR + 8 * i
        st.append((cfg["t8d"] - 2 if b == 7 else cfg["t8b"] + 4 * i, 2, sent_ld(b, land[b])))
        tail_items += sent_chk(b, land[b]) + accum(b, land[b])
    st.sort(key=lambda x: x[0])
    steps.append(step(17, cfg['LA3'], head=stamp_item(5), streams=st))
    uniq, k = [], 0
    site = [c for c in slow if "@" in c[0]]
    slow[:] = [c for c in slow if "@" not in c[0]]
    prev = None
    for i, body in enumerate(steps):
        if any("@" in x for x in body):
            code = site[k]
            k += 1
            if body != prev:
                lab = f"s{i}"
                slow.append([x.replace("@", lab) for x in code])
            prev = body
            steps[i] = [x.replace("@", lab) for x in body]
    i = 0
    while i < len(steps):
        e = i
        while e + 1 < len(steps) and steps[e + 1] == steps[i]:
            e += 1
        if e > i:
            A(f"s_mov_b32 s{S_LP}, {e - i + 1}")
            A(f"L_k3_loop{i}:")
            body = list(steps[i])
            cut = len(body)
            while cut > len(body) - 2 and body[cut - 1].startswith(("v_mfma", "buffer_", "v_add", "v_and", "v_lsh")):
                cut -= 1
            A.ext(body[:cut])
            A(f"s_sub_u32 s{S_LP}, s{S_LP}, 1")
            A(f"s_cmp_lg_u32 s{S_LP}, 0")
            A.ext(body[cut:])
            A(f"s_cbranch_scc1 L_k3_loop{i}")
        else:
            A.ext(steps[i])
        i = e + 1
    tail = []
    fin = [f"v_fma_f32 v{SUM + i}, v{FIN + i}, v{RS + i // 4}, v{SUM + i}" for i in range(16)]
    for it in fin + tail_items:
        put(tail, it)
    for m in range(4):
        tail += [f"v_cvt_pk_bf16_f32 v{PK + 2 * m + h}, v{SUM + 4 * m + 2 * h}, v{SUM + 4 * m + 2 * h + 1}" for h in range(2)]
        tail += [f"buffer_store_dwordx2 {v(PK + 2 * m, 2)}, v{VO}, {so}, s{S_OO} offen{OST}", f"s_add_u32 s{S_OO}, s{S_OO}, 18432"]
    if STEPPROF:
        A("s_memtime s[68:69]")
    A.ext(tail)
    stamp(A, 6, 1)
    if STEPPROF:
        A("s_waitcnt lgkmcnt(0)")
        A("v_lshrrev_b32 v1, 6, v0")
        A("v_lshlrev_b32 v1, 7, v1")
        A("s_lshl_b32 s70, s2, 9")
        A(f"s_add_u32 s70, s70, {PROF_OFF + (8 << 20)}")
        A("s_mov_b32 s10, 0x10000000")
        for n in range(19):
            A(f"v_mov_b32 v4, s{32 + 2 * n}")
            A(f"buffer_store_dword v4, v1, {ws}, s70 offen offset:{4 * n}")
        A(f"v_mov_b32 v4, s{S_SP}")
        A(f"buffer_store_dword v4, v1, {ws}, s70 offen offset:{4 * 19}")
    prof_flush(A, 0)
    A("L_exit:")
    A("s_endpgm")
    for code in slow:
        A.ext(code)
```

```python
from common import *
from front import cmul, mf

STG_ROW = 528
STG_WAVE = 56 * STG_ROW
IMG = 4 * STG_WAVE
LNB = IMG + 4096
LN_RS, LN_R = 1216, 9760
RED = 147456
K12_LDS = IMG + 36864

S_WAVE = 3
S_DBG, S_WS, S_X, S_D, S_W = 4, 8, 12, 16, 20
S_CH, S_KT = 24, 25
S_T = 26
S_P = 32
S_U = 62
S_SP, S_HO = 72, 73
CFG = dict(noshuf=0, cpf=1, g0=4, gs=0, gj0=6, gstep=8, st_at=26, stl=2, sx=1, w1s=1, wnt=1, pnt=1, xnt=0, pf=0, xdma=0, se=0)

ws = f"s[{S_WS}:{S_WS + 3}]"
GP, GZ = 84, 92
GX = 164
GS = 180
GA = 136
S_CW, S_ZF = 75, 80
S_DS = 16
dbg = f"s[{S_DBG}:{S_DBG + 3}]"
xs = f"s[{S_X}:{S_X + 3}]"
ZTARGET = 25


def gather(i):
    return f"buffer_load_dwordx2 {v(GX + 2 * i, 2)}, v{GA}, {xs}, s{S_U + 8 + i // 4} offen offset:{1152 * (i % 4)}"


STLOAD = [f"buffer_load_dwordx4 {v(GS + 4 * k, 4)}, v{GA + 1}, {ws}, 0 offen offset:{16 * k} sc1" for k in range(4)]


def zf_scalar(off):
    return f"s_load_dword s{S_ZF}, s[{S_P + 26}:{S_P + 27}], {off}"


def zf_check(A, tag, off, target, vr, sp=None):
    sp = S_SP if sp is None else sp
    A("s_waitcnt lgkmcnt(0)")
    A(f"s_cmp_lt_u32 s{S_ZF}, {target}")
    A(f"s_cbranch_scc1 L_zf{tag}")
    A(f"L_zfok{tag}:")
    base = f"s[{S_P + 26}:{S_P + 27}]"
    if target == 1:
        get = [f"v_mov_b32 v{vr}, {off}", f"global_load_dword v{vr}, v{vr}, {base} sc1", "s_waitcnt vmcnt(0)"]
    else:
        get = [f"v_mov_b32 v{vr}, 0", "s_mov_b64 exec, 1", f"global_atomic_add v{vr}, v{vr}, v{vr}, {base} offset:{off} sc0 sc1",
               "s_mov_b64 exec, -1", "s_waitcnt vmcnt(0)"]
    SLOW.append([f"L_zf{tag}:"] + get + [f"v_readfirstlane_b32 s{S_ZF}, v{vr}", f"s_cmp_ge_u32 s{S_ZF}, {target}",
                 f"s_cbranch_scc1 L_zfok{tag}", f"s_cmp_eq_u32 s{sp}, 0", f"s_cbranch_scc1 L_zfok{tag}",
                 f"s_sub_u32 s{sp}, s{sp}, 1", "s_sleep 2", f"s_branch L_zf{tag}"])


XF, UF, NPK = 40, 72, 196


def normalise1():
    out = []
    for b in range(4):
        for k in range(4):
            r = GX + 4 * k + (b >> 1)
            out.append(f"v_perm_b32 v{NPK + 16 + 4 * b + k}, v{r + 2}, v{r}, s{S_DS + 1 + (b & 1)}")
        out += [f"v_xor_b32 v3, {64 + 16 * b}, v{CO}", f"ds_write_b128 v3, {v(NPK + 16 + 4 * b, 4)}"]
    for i in range(16):
        out += [f"v_lshlrev_b32 v{XF + 2 * i}, 16, v{GX + i}", f"v_and_b32 v{XF + 2 * i + 1}, 0xffff0000, v{GX + i}"]
    return out


def normalise2(A):
    for h in range(2):
        for i in range(8):
            sp, r = v(GS + 2 * i, 2), 4 * i + 2 * h
            A(f"v_pk_fma_f32 {v(UF + r, 2)}, {v(XF + r, 2)}, {sp}, {sp} op_sel:[0,0,1] op_sel_hi:[1,0,1]")
        for b in (2 * h, 2 * h + 1):
            for k in range(4):
                A(f"v_cvt_pk_bf16_f32 v{NPK + 4 * b + k}, v{UF + 8 * k + b}, v{UF + 8 * k + 4 + b}")
            A(f"v_xor_b32 v1, {16 * b}, v{CO}")
            A(f"ds_write_b128 v1, {v(NPK + 4 * b, 4)}")


SLOW = []


def spin(tag, load, target, reg):
    SLOW.append([f"L_slow{tag}:", f"s_cmp_eq_u32 s{S_SP}, 0", f"s_cbranch_scc1 L_back{tag}", f"s_sub_u32 s{S_SP}, s{S_SP}, 1",
                 "s_sleep 1"] + load + ["s_waitcnt vmcnt(0)", f"v_cmp_ne_u32 vcc, {target}, v{reg}",
                 f"s_cbranch_vccnz L_slow{tag}", f"s_branch L_back{tag}"])
    return [f"v_cmp_ne_u32 vcc, {target}, v{reg}", f"s_cbranch_vccnz L_slow{tag}", f"L_back{tag}:"]


def kgen_issue(A):
    A(f"s_lshl_b32 s{S_T + 2}, s{S_CH}, 8")
    A(f"v_lshl_add_u32 v1, v2, 2, s{S_T + 2}")
    for i in range(6):
        A(f"global_load_dword v{GP + i}, v1, s[{S_P + 2 + 2 * i}:{S_P + 3 + 2 * i}]{' nt' if CFG['pnt'] else ''}")
    A(f"s_lshl_b32 s{S_T + 2}, s{S_CH}, 1")
    A(f"v_mov_b32 v1, s{S_T + 2}")
    A(f"global_load_ushort v{GP + 6}, v1, s[{S_P + 14}:{S_P + 15}]")


def kgen_valu(A, glate):
    U, DT, ADR = 4, 16, 17
    for i in range(6):
        A(f"v_lshlrev_b32 v{U + 2 * i}, 16, v{GP + i}")
        A(f"v_and_b32 v{U + 2 * i + 1}, 0xffff0000, v{GP + i}")
    A(f"v_lshlrev_b32 v{DT}, 16, v{GP + 6}")
    A(f"v_mul_f32 v{DT}, {LOG2E}, v{DT}")
    A(f"v_exp_f32 v{DT}, v{DT}")
    A(f"s_mul_i32 s{S_T}, s{S_WAVE}, {STG_WAVE}")
    A(f"v_lshl_add_u32 v{ADR}, v2, 3, s{S_T}")
    A(f"v_cvt_pk_bf16_f32 v{DT}, v{DT}, v{DT}")
    A(f"v_and_b32 v{DT}, 0xffff0000, v{DT}")
    for i in range(4):
        A(f"v_pk_mul_f32 {v(U + 2 * i, 2)}, {v(U + 2 * i, 2)}, {v(DT, 2)} op_sel_hi:[1,0]")
    for m in range(2):
        A(f"v_mul_f32 v{U + m}, {LOG2E}, v{U + m}")
        A(f"v_mul_f32 v{U + 2 + m}, {INV2PI}, v{U + 2 + m}")
    names = ["z1", "z8", "w", "z2", "z3", "z4", "z6", "t0", "t1", "p0", "p1", "y0", "y1"]
    R = {n: 48 + 4 * i if i < 8 else 100 + 4 * (i - 8) for i, n in enumerate(names)}
    TMP = 20
    for nm, lit in (("z8", "0x41000000"), ("z1", None), ("w", "0x43800000")):
        if lit:
            for m in range(2):
                A(f"v_mul_f32 v{TMP + m}, {lit}, v{U + m}")
                A(f"v_mul_f32 v{TMP + 2 + m}, {lit}, v{U + 2 + m}")
        src = TMP if lit else U
        for m in range(2):
            A(f"v_fract_f32 v{TMP + 2 + m}, v{src + 2 + m}")
        for m in range(2):
            A(f"v_exp_f32 v{TMP + m}, v{src + m}")
        for m in range(2):
            A(f"v_cos_f32 v{R[nm] + 2 * m}, v{TMP + 2 + m}")
            A(f"v_sin_f32 v{R[nm] + 2 * m + 1}, v{TMP + 2 + m}")
        A(f"v_pk_mul_f32 {v(R[nm], 2)}, {v(R[nm], 2)}, {v(TMP, 2)} op_sel_hi:[1,0]")
        A(f"v_pk_mul_f32 {v(R[nm] + 2, 2)}, {v(R[nm] + 2, 2)}, {v(TMP, 2)} op_sel:[0,1] op_sel_hi:[1,1]")
    for m in range(2):
        y = R["y0"] + 2 * m
        A(f"v_mul_f32 v{y}, v{U + 8 + m}, v{U + 4 + m}")
        A(f"v_mul_f32 v{y + 1}, v{U + 8 + m}, v{U + 6 + m}")
    for m in range(2):
        y = R["y0"] + 2 * m
        A(f"v_fma_f32 v{y}, -v{U + 10 + m}, v{U + 6 + m}, v{y}")
        A(f"v_fma_f32 v{y + 1}, v{U + 10 + m}, v{U + 4 + m}, v{y + 1}")
    offs = [[0, 1, 2, 3, 4, 5, 6, 7], [256, 256, 258, 260, 260, 260, 262, 264]]
    rows = {}
    for hi in range(2):
        for i in range(12):
            e = offs[hi][i] if i < 8 else (520, 516, 1032, 1544)[i - 8] + 256 * hi
            rows.setdefault(e, []).append(8 * (i >> 2) + 4 * hi + (i & 3))
    PK = [84, 86, 88, 90]
    pk = [0]

    def emit(reg, rws, neg):
        d = PK[pk[0] % 4]
        pk[0] += 1
        n = "-" if neg else ""
        out = [f"v_cvt_pk_bf16_f32 v{d + m}, v{reg + 2 * m}, {n}v{reg + 2 * m + 1}" for m in range(2)]
        out += [f"ds_write_b64 v{ADR}, {v(d, 2)} offset:{r * STG_ROW}" for r in rws]
        return out

    def both(d, x, y):
        c0, c1 = cmul(R[d], R[x], R[y]), cmul(R[d] + 2, R[x] + 2, R[y] + 2)
        return [c0[0], c1[0], c0[1], c1[1]]
    A("v_mov_b32 v24, 0x3f80")
    A("v_mov_b32 v25, 0x3f80")
    A.ext([f"ds_write_b64 v{ADR}, v[24:25] offset:{r * STG_ROW}" for r in rows[0]])
    A.ext(emit(R["z1"], rows[1], 0) + emit(R["w"], rows[256], 0))
    chain = [("z2", "z1", "z1", 2), ("p0", "w", "z8", 264), ("z3", "z2", "z1", 3), ("z4", "z2", "z2", 4),
             ("p1", "p0", "w", 520), ("t0", "w", "z2", 258), ("t1", "z4", "z1", 5), ("p0", "p1", "w", 776),
             ("z6", "z4", "z2", 6), ("t0", "z4", "z3", 7), ("p1", "p0", "w", 1032), ("t1", "w", "z4", 260),
             ("t0", "w", "z6", 262), ("p0", "p1", "w", 1288), ("z3", "t1", "w", 516), ("p1", "p0", "w", 1544),
             ("t0", "z3", "w", 772), ("p0", "p1", "w", 1800)]
    xi = iter(chain)
    cur, nxt = "y0", "y1"
    for j in range(32):
        if glate and j >= CFG["gj0"] and (j - CFG["gj0"]) % CFG["gstep"] == 0:
            A(glate.pop(0))
        if j == CFG["st_at"]:
            A(zf_scalar(0))
        ops = both(nxt, cur, "z8") if j < 31 else []
        ey = emit(R[cur], [24 + j], 1)
        A.ext(ops[:2] + ey[:2] + ops[2:] + ey[2:])
        c = next(xi, None)
        if c:
            A.ext(both(c[0], c[1], c[2]))
            A.ext(emit(R[c[0]], rows[c[3]], 0))
        cur, nxt = nxt, cur


def kgen_contract(A, glate):
    ACC = 4
    A("v_and_b32 v1, 31, v2")
    A(f"v_mul_u32_u24 v1, {STG_ROW}, v1")
    A("v_lshrrev_b32 v3, 5, v2")
    A("v_lshl_add_u32 v1, v3, 4, v1")
    A(f"v_add_u32 v1, s{S_T}, v1")
    lg = Cnt("lgkmcnt", 15)
    zf_check(A, "c", 0, 1, 3)
    if CFG["stl"] == 0:
        A.ext(glate + STLOAD)
        del glate[:]

    def rd(k):
        lg.issue()
        lg.issue(("f", k))
        return [f"ds_read_b128 {a(4 * k, 4)}, v1 offset:{32 * k}",
                f"ds_read_b128 {a(64 + 4 * k, 4)}, v1 offset:{32 * k + 24 * STG_ROW}"]
    AHEAD = 6
    for k in range(AHEAD):
        A.ext(rd(k))
    for k in range(16):
        A.ext(lg.wait(("f", k)))
        A(f"v_mfma_f32_32x32x16_bf16 {v(ACC, 16)}, {a(4 * k, 4)}, {a(64 + 4 * k, 4)}, {'0' if k == 0 else v(ACC, 16)}")
        if k + AHEAD < 16:
            A.ext(rd(k + AHEAD))
        if k == 4 and len(glate) > 1:
            A(glate.pop(0))
    if CFG["stl"] == 1:
        A.ext(glate + STLOAD)
        del glate[:]
    D0, D2, D1, D3, Z = 24, 28, 32, 36, GZ
    A(f"v_add_f32 v{ACC}, v{ACC}, v{TA + 7}")
    for k in range(4):
        A(f"v_cvt_pk_bf16_f32 v{D0 + k}, v{ACC + 2 * k}, v{ACC + 2 * k + 1}")
    A(f"v_cvt_pk_bf16_f32 v20, v{ACC + 8}, v{ACC + 9}")
    A(f"v_cvt_pk_bf16_f32 v21, v{ACC + 10}, v{ACC + 11}")
    A(f"ds_write_b128 v{TA}, {v(D0, 4)} offset:32")
    A(f"v_mov_b32_dpp v{D2}, v{D0 + 3} wave_shr:1 row_mask:0xf bank_mask:0xf bound_ctrl:1")
    A(f"v_mov_b32_dpp v22, v{D0 + 2} wave_shr:1 row_mask:0xf bank_mask:0xf bound_ctrl:1")
    for k in range(3):
        A(f"v_mov_b32 v{D2 + 1 + k}, v{D0 + k}")
    A(f"v_readlane_b32 s{S_T + 1}, v{D0 + 2}, 63")
    A(f"v_readlane_b32 s{S_T + 2}, v{D0 + 3}, 63")
    A(f"v_readlane_b32 s{S_T + 5}, v20, 63")
    A(f"ds_write_b128 v{TA}, {v(D2, 4)} offset:{32 + 2 * TSTR}")
    for k in range(4):
        A(f"v_alignbit_b32 v{D1 + k}, v{D0 + k}, v{D2 + k}, 16")
    A(f"ds_write_b128 v{TA}, {v(D1, 4)} offset:{32 + TSTR}")
    A(f"v_alignbit_b32 v{D3}, v{D2}, v22, 16")
    for k in range(3):
        A(f"v_mov_b32 v{D3 + 1 + k}, v{D1 + k}")
    A(f"ds_write_b128 v{TA}, {v(D3, 4)} offset:{32 + 3 * TSTR}")
    A(f"s_lshr_b32 s{S_T + 1}, s{S_T + 1}, 16")
    A(f"s_pack_ll_b32_b16 s{S_T + 1}, s{S_T + 1}, s{S_T + 2}")
    A(f"s_pack_hh_b32_b16 s{S_T + 3}, s{S_T + 2}, s{S_T + 2}")
    A(f"s_lshr_b32 s{S_T + 4}, s{S_T + 2}, 16")
    A(f"s_pack_ll_b32_b16 s{S_T + 5}, s{S_T + 5}, s{S_T + 5}")
    AA, BB, KK, K0 = S_T + 1, S_T + 2, S_T + 3, S_T + 4
    for r, row in enumerate(((KK, K0), (KK, KK), (BB, KK, K0), (AA, KK, KK))):
        for k, sr in enumerate(row):
            A(f"v_writelane_b32 v{Z + k}, s{sr}, {8 * r + 2}")
    A(f"ds_write_b32 v{TA + 1}, v20")
    A(f"ds_write_b16 v{TA + 2}, v21 offset:128")
    A(f"ds_write_b16_d16_hi v{TA + 2}, v21")
    A(f"ds_write_b128 v{TA + 3}, {v(Z, 4)}")
    for k in range(4):
        A(f"v_and_b32 v{CF + k}, s{S_T + 5}, v{CF + k}")
    if CFG["stl"] == 2:
        A.ext(glate + STLOAD)
        del glate[:]
    for i in (4, 6, 8, 3, 5, 7):
        A(f"ds_read2_b64 {a(A2 + 4 * (i - 3), 4)}, v{TA + 4} offset0:{8 * (8 - i)} offset1:{8 * (8 - i) + 1}")
    for i in range(4, 8):
        for h in range(2):
            o = 16 * (7 - i) + 2 * h
            A(f"ds_read2_b32 {a(A3 + 4 * (i - 4) + 2 * h, 2)}, v{TA + 5} offset0:{o} offset1:{o + 1}")
    for q in range(17):
        for h in range(2):
            A(f"ds_read_b64_tr_b16 {a(AK + 4 * q + 2 * h, 2)}, v{TA + 6} offset:{64 * q + 8 * (1 - h)}")


CA = 4
AK, A2, A3, AW = 128, 196, 220, 236
TA = 128
TSTR, TB2 = 1216, 4864
CF = 144
CB = 148
CU = 164
CD = 196
CW = 220
CAD = 232
CO = 244


def conv_setup(A, glate):
    A("v_lshlrev_b32 v1, 4, v0")
    A(f"v_add_u32 v1, {IMG}, v1")
    A(f"ds_write_b128 v1, {v(GZ, 4)}")
    lo, g, dl, t = CD, CD + 1, CD + 2, CD + 4
    A(f"v_and_b32 v{lo}, 15, v2")
    A(f"v_lshrrev_b32 v{g}, 4, v2")
    A(f"v_lshlrev_b32 v{dl}, 3, v{g}")
    A(f"v_sub_u32 v{dl}, v{lo}, v{dl}")
    A(f"s_mov_b32 s{S_T + 3}, 0x8001")
    A(f"s_mov_b32 s{S_T + 4}, 0x10001")
    bands = [(6, 10, CB, 0x3f80), (11, 13, CB + 4, 0x3f80), (4, 12, CB + 8, 0x3f80), (5, 11, CB + 12, 0x3f80),
             (12, 13, CF, 0xffff)]
    for b0, b1, d, one in bands:
        A(f"v_add_u32 v{t + 2}, {b0 + 32}, v{dl}")
        A(f"v_mov_b32 v{t}, {(1 << (b1 - b0 + 1)) - 1}")
        A(f"v_mov_b32 v{t + 1}, 0")
        A(f"v_lshlrev_b64 {v(t, 2)}, v{t + 2}, {v(t, 2)}")
        for k in range(4):
            A(f"v_bfe_u32 v{d + k}, v{t + 1}, {2 * k}, 2")
        for k in range(4):
            A(f"v_mul_u32_u24 v{d + k}, s{S_T + 3}, v{d + k}")
        for k in range(4):
            A(f"v_and_b32 v{d + k}, s{S_T + 4}, v{d + k}")
        for k in range(4):
            A(f"v_mul_u32_u24 v{d + k}, {one}, v{d + k}")
    if glate:
        A(glate.pop(0))
    A(f"s_mov_b32 s{S_T + 3}, {IMG}")

    def addr(dst, row, piece_extra=0):
        A(f"v_bfe_u32 v{t}, v{row}, 1, 3")
        A(f"v_xor_b32 v{t}, s{S_WAVE}, v{t}")
        if piece_extra:
            A(f"v_xor_b32 v{t}, {piece_extra}, v{t}")
        A(f"v_lshl_add_u32 v{t}, v{t}, 4, s{S_T + 3}")
        A(f"v_lshl_add_u32 v{dst}, v{row}, 7, v{t}")
    row, r2 = t + 2, t + 3
    A(f"v_lshl_add_u32 v{r2}, v{lo}, 1, v{g}")
    for r in range(4, 8):
        A(f"v_add_u32 v{row}, {30 - 4 * r}, v{r2}")
        addr(CAD + r - 4, row)
    A(f"v_add3_u32 v{row}, v{lo}, v{g}, 29")
    addr(CAD + 4, row)
    A(f"v_add_u32 v{row}, 29, v{r2}")
    addr(CAD + 5, row)
    A(f"v_lshrrev_b32 v{r2}, 1, v{g}")
    A(f"v_lshl_add_u32 v{row}, v{lo}, 1, v{r2}")
    A(f"v_add_u32 v{row}, 32, v{row}")
    addr(CAD + 6, row, 4)
    A(f"v_and_b32 v{row}, 1, v{g}")
    A(f"v_lshl_add_u32 v{CAD + 6}, v{row}, 3, v{CAD + 6}")
    A(f"v_lshrrev_b32 v{t}, 2, v{lo}")
    A(f"v_lshl_add_u32 v{t}, v{row}, 2, v{t}")
    A(f"v_mul_u32_u24 v{t}, 73728, v{t}")
    A(f"s_bfe_u32 s{S_T + 4}, s{S_CH}, 0x20001")
    A(f"v_and_b32 v{t + 1}, 3, v{lo}")
    A(f"v_xor_b32 v{t + 1}, s{S_T + 4}, v{t + 1}")
    A(f"v_lshl_add_u32 v{t}, v{t + 1}, 5, v{t}")
    A(f"v_lshl_add_u32 v{CAD + 7}, v{r2}, 4, v{t}")
    A(f"s_lshl_b32 s{S_HO}, s{S_CH}, 7")
    A(f"s_add_u32 s{S_HO}, s{S_HO}, {HT}")
    A(f"s_mul_i32 s{S_T + 3}, s{S_WAVE}, {STG_WAVE}")
    A(f"v_lshl_add_u32 v{TA}, v2, 4, s{S_T + 3}")
    A(f"s_add_u32 s{S_T + 4}, s{S_T + 3}, {TB2 + R2B + 380}")
    A(f"v_lshlrev_b32 v{t}, 2, v2")
    A(f"v_sub_u32 v{TA + 1}, s{S_T + 4}, v{t}")
    A(f"s_add_u32 s{S_T + 4}, s{S_T + 3}, {TB2 + R3B + 126}")
    A(f"v_lshlrev_b32 v{t}, 1, v2")
    A(f"v_sub_u32 v{TA + 2}, s{S_T + 4}, v{t}")
    A(f"v_and_b32 v{t}, 7, v2")
    A(f"v_lshrrev_b32 v{t + 1}, 1, v{t}")
    A(f"v_min_u32 v{t + 1}, 1, v{t + 1}")
    A(f"v_lshlrev_b32 v{t + 1}, 10, v{t + 1}")
    A(f"v_bfe_u32 v{row}, v2, 3, 2")
    A(f"v_mul_u32_u24 v{r2}, {TSTR}, v{row}")
    A(f"v_add_u32 v{t + 1}, v{t + 1}, v{r2}")
    A(f"v_and_b32 v{row}, 1, v{row}")
    A(f"v_mul_u32_u24 v{row}, 384, v{row}")
    A(f"v_add_u32 v{row}, {TB2 + 256}, v{row}")
    A("v_cmp_gt_u32 vcc, 32, v2")
    A(f"v_cndmask_b32 v{t + 1}, v{row}, v{t + 1}, vcc")
    A(f"v_lshl_add_u32 v{t}, v{t}, 4, s{S_T + 3}")
    A(f"v_add_u32 v{TA + 3}, v{t}, v{t + 1}")
    A(f"v_and_b32 v{g}, 48, v2")
    A(f"v_add_u32 v{r2}, s{S_T + 3}, v{g}")
    A(f"v_lshlrev_b32 v{t}, 3, v{lo}")
    A(f"v_sub_u32 v{t}, v{r2}, v{t}")
    A(f"v_add_u32 v{TA + 4}, {TB2 + R2B + 120}, v{t}")
    A(f"v_lshlrev_b32 v{t}, 2, v{lo}")
    A(f"v_sub_u32 v{t}, v{r2}, v{t}")
    A(f"v_add_u32 v{TA + 5}, {TB2 + R3B + 60}, v{t}")
    A(f"v_bfe_u32 v{t}, v2, 2, 2")
    A(f"v_mul_u32_u24 v{t}, {TSTR}, v{t}")
    A(f"v_and_b32 v{t + 1}, 3, v2")
    A(f"v_lshl_add_u32 v{t}, v{t + 1}, 3, v{t}")
    A(f"v_sub_u32 v{t}, v{t}, v{g}")
    A(f"v_add3_u32 v{TA + 6}, v{t}, s{S_T + 3}, 56")
    A(f"v_lshlrev_b32 v{CAD + 11}, 4, v2")
    A(f"v_bfe_u32 v{t}, v0, 1, 3")
    A(f"v_lshlrev_b32 v{t}, 4, v{t}")
    A(f"v_lshl_add_u32 v{t}, v0, 7, v{t}")
    A(f"v_add_u32 v{CO}, {IMG + 4096}, v{t}")
    A("s_waitcnt lgkmcnt(0)")
    A(f"s_bitcmp1_b32 s{S_WAVE}, 1")
    A(f"s_cselect_b32 s{S_DS}, s83, s82")
    A(f"s_lshl_b32 s{S_DS + 1}, s{S_DS}, 16")
    A(f"s_and_b32 s{S_DS + 2}, s{S_DS}, 0xffff0000")
    A(f"s_bitcmp1_b32 s{S_WAVE}, 0")
    A(f"s_cselect_b32 s{S_DS}, s{S_DS + 2}, s{S_DS + 1}")
    A(f"v_mov_b32 v{TA + 7}, 0")
    A(f"v_writelane_b32 v{TA + 7}, s{S_DS}, 0")
    A(f"s_mov_b32 s{S_DS + 1}, 0x05040100")
    A(f"s_mov_b32 s{S_DS + 2}, 0x07060302")


def mfx(d, x, y, c):
    return f"v_mfma_f32_16x16x32_bf16 {v(d, 4)}, {x}, {y}, {c if isinstance(c, str) else v(c, 4)}"


def conv_main(A):
    lg = Cnt("lgkmcnt", 15)
    reads = [("x2", j, CAD + 4, 2048 * j) for j in range(12)]
    for j in range(4):
        reads += [("x3e", j, CAD + 5, 4096 * j), ("x3o", j, CAD + 0, 2048 + 4096 * j)]
    for Tp in range(8):
        for r in range(8):
            reads.append(("d", (Tp, r), CAD + (r & 3), (2048 if r < 4 else 0) + 4096 * Tp))
    slot = {(k, i): CU + 4 * (n % 8) for n, (k, i, _, _) in enumerate(reads)}
    nxt = [0]
    started = set()

    def put(it):
        if it == "rd":
            if nxt[0] < len(reads):
                k, i, ad, off = reads[nxt[0]]
                nxt[0] += 1
                lg.issue((k, i))
                A(f"ds_read_b128 {v(slot[(k, i)], 4)}, v{ad} offset:{off}")
        elif isinstance(it, tuple):
            if it[0] == "lg":
                lg.issue(it[1])
                A(it[2])
            else:
                A.ext(lg.wait(it[1]))
        else:
            A(it)

    def acc(T, x, y):
        c = CA + 4 * T if T in started else "0"
        started.add(T)
        return mfx(CA + 4 * T, x, y, c)

    def weave(ms, fill):
        fill = list(fill)
        for i, (w, m) in enumerate(ms):
            for x in w:
                put(x)
            A(m)
            n = len(fill) if i == len(ms) - 1 else 2 - min(1, len(ms[i + 1][0]))
            for x in fill[:n]:
                put(x)
            fill = fill[n:]
    for _ in range(6):
        put("rd")
    boxes = [("x2", j) for j in range(12)] + [("x3", j) for j in range(4)]
    NB = len(boxes)
    for n in range(NB + 2):
        ms, f1, cv = [], [], []
        if n >= 2:
            k, j = boxes[n - 2]
            w = CW + 4 * ((n - 2) % 3)
            for T in range(8):
                if k == "x2" and 3 <= 2 * T - j <= 8:
                    ms.append(([], acc(T, v(w, 4), a(A2 + 4 * (2 * T - j - 3), 4))))
                if k == "x3" and 4 <= T - j <= 7:
                    ms.append(([], acc(T, v(w, 4), a(A3 + 4 * (T - j - 4), 4))))
        if n < NB:
            k, j = boxes[n]
            d = CD + 8 * (n % 3)
            if k == "x2":
                ms = [([("lgw", ("x2", j))], mf(d, slot[("x2", j)], CB, "0")), ([], mf(d + 4, slot[("x2", j)], CB + 4, "0"))] + ms
                f1 = ["rd"]
            else:
                ms = [([("lgw", ("x3o", j))], mf(d, slot[("x3e", j)], CB + 8, "0")), ([], mf(d + 4, slot[("x3o", j)], CB + 12, "0"))] + ms
                f1 = ["rd", "rd"]
        if 1 <= n <= NB:
            d = CD + 8 * ((n - 1) % 3)
            cv = [f"v_cvt_pk_bf16_f32 v{CW + 4 * ((n - 1) % 3) + i}, v{d + i}, v{d + 4 + i}" for i in range(4)]
        weave(ms, f1 + cv)

    def epi(T):
        o, rr, tm = CO + 2 * (T & 1), CO + 4, CD
        out = [("lgw", ("r", T))]
        for h in range(2):
            out += [f"v_lshlrev_b32 v{tm + 2 * h}, 16, v{rr + h}", f"v_and_b32 v{tm + 2 * h + 1}, 0xffff0000, v{rr + h}"]
        out += [f"v_add_f32 v{tm + i}, v{tm + i}, v{CA + 4 * T + i}" for i in range(4)]
        out += [f"v_cvt_pk_bf16_f32 v{o + h}, v{tm + 2 * h}, v{tm + 2 * h + 1}" for h in range(2)]
        if T & 1:
            out += [f"s_add_u32 s{S_T}, s{S_HO}, {294912 * (T - 1)}", f"v_permlane16_swap_b32 v{CO}, v{CO + 2}",
                    f"v_permlane16_swap_b32 v{CO + 1}, v{CO + 3}",
                    f"buffer_store_dwordx4 {v(CO, 4)}, v{CAD + 7}, {ws}, s{S_T} offen sc1"]
        return out
    pend = []
    for Tp in range(8):
        for r in range(8):
            u = v(slot[("d", (Tp, r))], 4)
            ms = [([("lgw", ("d", (Tp, r)))], acc(Tp, a(AK + 4 * r, 4), u))]
            if Tp + 1 < 8:
                ms.append(([], acc(Tp + 1, a(AK + 4 * r + 32, 4), u)))
            if r == 0:
                if Tp + 2 < 8:
                    ms.append(([], acc(Tp + 2, a(AK + 64, 4), u)))
                if Tp + 4 < 8:
                    ms.append(([], acc(Tp + 4, v(CF, 4), u)))
            if r & 1:
                ms = [(ms[0][0], m) if i == 0 else ([], m) for i, m in enumerate([x[1] for x in ms][::-1])]
            take = 2 if r >= 1 else 0
            fl, pend = pend[:take + (1 if pend and isinstance(pend[0], tuple) else 0)] if take else [], pend[take + (1 if pend and isinstance(pend[0], tuple) else 0):] if take else pend
            extra = []
            if r == 7:
                fl, pend = fl + pend, []
                extra = [("lg", ("r", Tp), f"ds_read_b64 {v(CO + 4, 2)}, v{CAD + 6} offset:{4096 * Tp}")]
            weave(ms, fl + extra + ["rd"])
        pend = epi(Tp)
    for x in pend:
        put(x)


SH = 120
SV = 124
SF = 128


def shuf_addr(A, lds_base):
    A("v_lshrrev_b32 v1, 3, v2")
    A(f"v_mul_u32_u24 v{SV}, s{S_U + 1}, v1")
    A("v_lshrrev_b32 v1, 4, v2")
    A("v_lshlrev_b32 v1, 1, v1")
    A("v_xor_b32 v1, v1, v2")
    A("v_and_b32 v1, 7, v1")
    A(f"v_lshl_add_u32 v{SV}, v1, 4, v{SV}")
    A("v_lshrrev_b32 v1, 2, v2")
    A(f"v_lshl_add_u32 v{SH}, v1, 7, s{lds_base}")
    A("v_bfe_u32 v1, v2, 3, 2")
    A(f"v_lshl_add_u32 v{SH}, v1, 5, v{SH}")
    A("v_and_b32 v1, 3, v2")
    A(f"v_lshl_add_u32 v{SH}, v1, 3, v{SH}")
    for m in range(1, 4):
        A(f"v_xor_b32 v{SH + m}, {32 * m}, v{SH}")
    A(f"v_lshlrev_b32 v{SV + 1}, 4, v2")


def shuf_dma(A, lds_off):
    for q in range(4):
        A(f"s_add_u32 m0, s{S_U + 4}, {lds_off + 1024 * q}")
        if q:
            A(f"s_add_u32 s{S_U + 2}, s{S_U + 2}, s{S_U + 6}")
        A(f"buffer_load_dwordx4 v{SV}, s[{S_W}:{S_W + 3}], s{S_U + 2} offen {'nt ' if CFG['wnt'] else ''}lds")
    A(f"s_add_u32 s{S_U + 2}, s{S_U + 2}, s{S_U + 7}")


def shuf_read(A, dst, off, reg=v):
    for c in range(4):
        for h in range(2):
            A(f"ds_read_b64_tr_b16 {reg(dst + 4 * c + 2 * h, 2)}, v{SH + c} offset:{off + 2048 * h}")


def w2_task(A):
    unit, ks = S_T + 2, S_T + 3
    srd(A, S_W, S_P + 22, W_BYTES)
    A(f"s_mul_hi_u32 s{unit}, s{S_T + 4}, 0xe38e38f")
    A(f"s_mul_i32 s{ks}, s{unit}, 18")
    A(f"s_sub_u32 s{ks}, s{S_T + 4}, s{ks}")
    A(f"s_mul_hi_u32 s{S_U + 2}, s{unit}, 0x1c71c71d")
    A(f"s_mul_i32 s{S_U + 2}, s{S_U + 2}, {576 * 1152 - 9 * 128}")
    A(f"s_lshl_b32 s{S_U + 3}, s{unit}, 7")
    A(f"s_add_u32 s{S_U + 2}, s{S_U + 2}, s{S_U + 3}")
    A(f"s_mul_i32 s{S_U + 3}, s{ks}, {32 * 1152}")
    A(f"s_add_u32 s{S_U + 2}, s{S_U + 2}, s{S_U + 3}")
    A(f"s_mul_i32 s{S_U + 3}, s{unit}, 73728")
    A(f"s_lshl_b32 s{S_U + 5}, s{ks}, 10")
    A(f"s_add_u32 s{S_U + 3}, s{S_U + 3}, s{S_U + 5}")
    A(f"s_add_u32 s{S_U + 3}, s{S_U + 3}, {W2S}")
    A(f"s_mov_b32 s{S_U + 1}, 1152")
    A(f"s_mov_b32 s{S_U + 6}, {8 * 1152}")
    A(f"s_mov_b32 s{S_U + 7}, {8 * 1152}")


LW = 240
LSH = 250
S_LD, S_LS = 81, 83
LATE_LDS = 98304


def late_w2_setup(A, g0):
    A(f"s_lshl_b32 s{S_T + 4}, s2, 2")
    A(f"s_add_u32 s{S_T + 4}, s{S_T + 4}, s{S_WAVE}")
    A(f"s_add_u32 s{S_T + 4}, s{S_T + 4}, {g0}")
    w2_task(A)
    A(f"s_mov_b32 s{S_LD}, s{S_U + 3}")


def late_w2_keep(A, delta, wave_stride):
    for c in range(4):
        A(f"v_add_u32 v{LSH + c}, {delta}, v{SH + c}")
    A(f"s_mov_b32 s{S_LS}, {wave_stride}")


def late_w2_prev(A):
    for c in range(4):
        A(f"v_subrev_u32 v{LSH + c}, s{S_LS}, v{LSH + c}")
    A(f"s_sub_u32 s{S_LD}, s{S_LD}, {4 * 18432 + 1024}")


def late_w2_read(A):
    for c in range(4):
        for h in range(2):
            A(f"ds_read_b64_tr_b16 {a(LW + 4 * c + 2 * h, 2)}, v{LSH + c} offset:{2048 * h}")


def late_w2_store(A, voff):
    for c in range(4):
        A(f"buffer_store_dwordx4 {a(LW + 4 * c, 4)}, v{voff}, {ws}, s{S_LD} offen sc1")
        A(f"s_add_u32 s{S_LD}, s{S_LD}, 18432")


def aux_stats(A):
    A(f"s_sub_u32 s{S_T}, s2, 216")
    A(f"s_mul_i32 s{S_T + 1}, s{S_WAVE}, 40")
    A(f"s_add_u32 s{S_T + 1}, s{S_T + 1}, s{S_T}")
    A("v_lshrrev_b32 v1, 3, v2")
    A("v_mul_u32_u24 v3, 1152, v1")
    A("v_and_b32 v4, 7, v2")
    A("v_lshl_add_u32 v3, v4, 4, v3")
    A(f"s_mul_i32 s{S_T + 2}, s{S_T + 1}, 9216")
    A(f"v_add_u32 v3, s{S_T + 2}, v3")
    A(f"v_add_u32 v5, {160 * 9216}, v3")
    nt = " nt" if CFG["xnt"] & 1 else ""
    for p in range(2):
        for i in range(9):
            A(f"buffer_load_dwordx4 {v(12 + 36 * p + 4 * i, 4)}, v{3 + 2 * p}, {xs}, 0 offen offset:{128 * i}{nt}")
    A("v_min_u32 v4, 1, v4")
    A("v_lshlrev_b32 v4, 31, v4")
    A("v_lshl_add_u32 v4, v1, 3, v4")
    late_w2_setup(A, 272)
    A(f"s_lshl_b32 s{S_U + 4}, s{S_WAVE}, 12")
    shuf_addr(A, S_U + 4)
    late_w2_keep(A, LATE_LDS, 4096)
    ne = 0
    A(f"s_mov_b32 s{S_T + 2}, {ONES}")
    for p in range(2):
        S, Q = 7 + 2 * p, 6 + 2 * p
        for i in range(9):
            if i % 3 == 0:
                A(f"s_waitcnt vmcnt({15 - 9 * p - i + 4 * ne})")
            for k in range(4):
                r, first = 12 + 36 * p + 4 * i + k, i == 0 and k == 0
                A(f"v_dot2_f32_bf16 v{S}, v{r}, s{S_T + 2}, {'0' if first else 'v%d' % S}")
                A(f"v_dot2_f32_bf16 v{Q}, v{r}, v{r}, {'0' if first else 'v%d' % Q}")
    A(zf_scalar(0))
    A(f"s_lshl_b32 s{S_T + 2}, s{S_T + 1}, 6")
    A(f"s_add_u32 s{S_T + 2}, s{S_T + 2}, {ST}")
    A(f"s_add_u32 s{S_T + 3}, s{S_T + 2}, {160 * 64}")
    for ctl in ("quad_perm:[1,0,3,2]", "quad_perm:[2,3,0,1]", "row_half_mirror"):
        for r in (6, 7, 8, 9):
            A(f"v_add_f32_dpp v{r}, v{r}, v{r} {ctl} row_mask:0xf bank_mask:0xf")
    for r in (6, 7, 8, 9):
        A(f"v_mul_f32 v{r}, {INV576}, v{r}")
    for op in ("v_fma_f32 v{q}, -v{s}, v{s}, v{q}", "v_max_f32 v{q}, 0, v{q}", f"v_add_f32 v{{q}}, {EPS}, v{{q}}",
               "v_rsq_f32 v{q}, v{q}", "v_or_b32 v{q}, 1, v{q}", "v_mul_f32 v{s}, -v{s}, v{q}"):
        for p in range(2):
            A(op.format(q=6 + 2 * p, s=7 + 2 * p))
    stamp(A, 1)
    zf_check(A, "s", 0, 1, 3)
    A(f"buffer_store_dwordx2 v[6:7], v4, {ws}, s{S_T + 2} offen sc1")
    A(f"s_cmp_ge_u32 s{S_T + 1}, 96")
    A("s_cbranch_scc1 L_aux_4")
    A(f"buffer_store_dwordx2 v[8:9], v4, {ws}, s{S_T + 3} offen sc1")
    A("L_aux_4:")
    stamp(A, 2)
    shuf_dma(A, LATE_LDS)
    A(f"s_cmp_ge_u32 s{S_T}, 34")
    A("s_cbranch_scc1 L_front_end")
    A(f"s_lshl_b32 s{S_T + 4}, s{S_T}, 2")
    A(f"s_add_u32 s{S_T + 4}, s{S_T + 4}, s{S_WAVE}")
    A(f"s_lshl_b32 s{S_T + 4}, s{S_T + 4}, 1")
    w2_task(A)
    for n in range(ne, 2):
        shuf_dma(A, 16384 * n)
    A("s_waitcnt vmcnt(0)")
    stamp(A, 3)
    for n in range(2):
        shuf_read(A, SF + 16 * n, 16384 * n)
        A("s_waitcnt lgkmcnt(0)")
        for c in range(4):
            A(f"s_add_u32 s{S_U + 5}, s{S_U + 3}, {c * 18432 + 1024 * n}")
            A(f"buffer_store_dwordx4 {v(SF + 16 * n + 4 * c, 4)}, v{SV + 1}, {ws}, s{S_U + 5} offen sc1")
    A("s_branch L_front_end")


def aux_path(A):
    pre = 0
    A("s_cmp_ge_u32 s2, 216")
    A("s_cbranch_scc1 L_aux_st")
    A(f"s_sub_u32 s{S_U}, s2, 144")
    A("v_mov_b32 v5, 1")
    A(f"s_mov_b32 s{S_ZF}, 1")
    A(f"s_cmp_lg_u32 s{S_U}, 0")
    A("s_cbranch_scc1 L_aux_0")
    A("v_lshlrev_b32 v1, 4, v0")
    for i in range(4):
        A(f"s_mov_b32 s{S_T + 1}, {ST + 4096 * i}")
        A(f"buffer_store_dwordx4 {v(GZ, 4)}, v1, {ws}, s{S_T + 1} offen sc1")
    A("v_min_u32 v1, 1, v0")
    A("v_lshlrev_b32 v1, 31, v1")
    A("s_waitcnt vmcnt(0)")
    A("s_barrier")
    A(f"buffer_store_dword v5, v1, {dbg}, 0 offen sc1")
    A("s_branch L_aux_1")
    A("L_aux_0:")
    A(f"s_mov_b32 s{S_ZF}, 0")
    A(f"s_cmp_lg_u32 s{S_WAVE}, 3")
    A("s_cbranch_scc1 L_aux_1")
    A(f"s_cmp_gt_u32 s{S_U}, {ZTARGET}")
    A("s_cbranch_scc1 L_aux_1")
    A(f"s_mov_b32 s{S_ZF}, 1")
    A("v_lshlrev_b32 v1, 4, v2")
    A(f"s_lshl_b32 s{S_T + 2}, s{S_U}, 11")
    A(f"s_add_u32 s{S_T + 2}, s{S_T + 2}, {CNT - 2048}")
    A(f"buffer_store_dwordx4 {v(GZ, 4)}, v1, {ws}, s{S_T + 2} offen sc1")
    A(f"buffer_store_dwordx4 {v(GZ, 4)}, v1, {ws}, s{S_T + 2} offen offset:1024 sc1")
    A("s_waitcnt vmcnt(0)")
    A("s_mov_b64 exec, 1")
    A(f"buffer_atomic_add v5, off, {dbg}, 0 offset:128 sc1")
    A("s_mov_b64 exec, -1")
    A("L_aux_1:")
    if CFG["sx"]:
        A(f"s_and_b32 s{S_T + 2}, s{S_U}, 7")
        A(f"s_mul_i32 s{S_T + 2}, s{S_T + 2}, 9")
        A(f"s_lshr_b32 s{S_U}, s{S_U}, 3")
        A(f"s_add_u32 s{S_U}, s{S_U}, s{S_T + 2}")
    srd(A, S_W, S_P + 20, W_BYTES)
    A(f"s_lshl_b32 s{S_U + 2}, s{S_U}, 7")
    A(f"s_add_u32 s{S_T + 2}, s{S_U + 2}, s{S_W}")
    A(f"s_bfe_u32 s{S_T + 2}, s{S_T + 2}, 0x30007")
    A(f"s_cmp_eq_u32 s{S_T + 2}, 3")
    A(f"s_cselect_b32 s{S_ZF}, 1, s{S_ZF}")
    A(f"s_mul_i32 s{S_U + 3}, s{S_WAVE}, {32 * 9216}")
    A(f"s_add_u32 s{S_U + 2}, s{S_U + 2}, s{S_U + 3}")
    A(f"s_mov_b32 s{S_U + 1}, 9216")
    A(f"s_mov_b32 s{S_U + 6}, {8 * 9216}")
    A(f"s_mov_b32 s{S_U + 7}, {104 * 9216}")
    A(f"s_lshl_b32 s{S_U + 4}, s{S_WAVE}, 12")
    shuf_addr(A, S_U + 4)
    for n in range(4):
        if n and n == CFG["w1s"]:
            A(f"s_cmp_eq_u32 s{S_ZF}, 1")
            A("s_cbranch_scc1 L_aux_go")
            A("s_waitcnt vmcnt(0)")
            A("L_aux_go:")
        shuf_dma(A, 16384 * n)
    A(f"s_cmp_ge_u32 s{S_WAVE}, 2")
    A("s_cbranch_scc1 L_aux_a")
    shuf_dma(A, 65536)
    A("L_aux_a:")
    late_w2_setup(A, 272)
    late_w2_keep(A, LATE_LDS, 4096)
    A("v_lshrrev_b32 v1, 3, v2")
    A(f"v_mul_u32_u24 v1, {9216 - 1152}, v1")
    A(f"v_sub_u32 v{SV}, v{SV}, v1")
    shuf_dma(A, LATE_LDS)
    A(f"s_mul_i32 s{S_U + 3}, s{S_U}, 73728")
    A(f"s_lshl_b32 s{S_U + 5}, s{S_WAVE}, 10")
    A(f"s_add_u32 s{S_U + 3}, s{S_U + 3}, s{S_U + 5}")
    A(f"s_add_u32 s{S_U + 3}, s{S_U + 3}, {W1S}")
    for i in range(16):
        A(f"v_mov_b32 v{SF + 64 + i}, 0")
    for i in range(4):
        A(f"v_mov_b32 v{4 + i}, {ONES}")
    for n in range(4):
        if n >= pre:
            A(f"s_waitcnt vmcnt({4 * (4 - n)})")
        shuf_read(A, SF + 16 * n, 16384 * n)
        A("s_waitcnt lgkmcnt(0)")
    for c in range(4):
        A(f"v_add_u32 v{SH + c}, 65536, v{SH + c}")
    A(f"s_cmp_ge_u32 s{S_WAVE}, 2")
    A("s_cbranch_scc1 L_aux_b")
    shuf_read(A, SF + 64, 0)
    A("s_waitcnt lgkmcnt(0)")
    A("L_aux_b:")
    stamp(A, 3)
    for n in range(5):
        for c in range(4):
            A(mf(8 + 4 * c, 4, SF + 16 * n + 4 * c, "0" if n == 0 else 8 + 4 * c))
    A("v_and_b32 v1, 15, v2")
    A("v_lshlrev_b32 v1, 4, v1")
    A(f"v_add_u32 v1, {RED}, v1")
    A(f"s_lshl_b32 s{S_U + 5}, s{S_WAVE}, 8")
    A(f"v_add_u32 v3, s{S_U + 5}, v1")
    for c in range(4):
        A(f"v_mov_b32 v{24 + c}, v{8 + 4 * c}")
    A("ds_write_b128 v3, v[24:27]")
    A(f"s_mov_b32 s{S_U + 6}, 0x00003f80")
    A(f"s_mov_b32 s{S_U + 7}, 0x3f800000")
    A("s_waitcnt lgkmcnt(0)")
    A("s_barrier")
    for w in range(4):
        A(f"ds_read_b128 {v(8 + 4 * w, 4)}, v1 offset:{256 * w}")
    A("s_waitcnt lgkmcnt(0)")
    for w in range(1, 4):
        for h in range(2):
            A(f"v_pk_add_f32 {v(8 + 2 * h, 2)}, {v(8 + 2 * h, 2)}, {v(8 + 4 * w + 2 * h, 2)}")
    for c in range(4):
        A(f"v_mul_f32 v{8 + c}, {INV576 | 0x80000000}, v{8 + c}")
    for n in range(5):
        if n == 4:
            A(f"s_cmp_ge_u32 s{S_WAVE}, 2")
            A("s_cbranch_scc1 L_front_end")
        for c in range(4):
            t, f = 32 + 8 * (c & 1), SF + 16 * n + 4 * c
            for e in range(8):
                A(f"v_dot2_f32_bf16 v{t + e}, v{f + (e >> 1)}, s{S_U + 6 + (e & 1)}, v{8 + c}")
            A(f"s_add_u32 s{S_U + 5}, s{S_U + 3}, {c * 18432 + 4096 * n}")
            for k in range(4):
                A(f"v_cvt_pk_bf16_f32 v{f + k}, v{t + 2 * k}, v{t + 2 * k + 1}")
            A(f"buffer_store_dwordx4 {v(f, 4)}, v{SV + 1}, {ws}, s{S_U + 5} offen sc1")
    A("s_branch L_front_end")
    A("L_aux_st:")
    aux_stats(A)


def code_prefetch(A):
    lo = CFG["cpf"] - 1
    A(f"s_sub_u32 s{S_T + 4}, s2, {lo}")
    A(f"s_cmp_ge_u32 s{S_T + 4}, 16")
    A("s_cbranch_scc1 L_cpf")
    A(f"s_getpc_b64 s[{S_T + 2}:{S_T + 3}]")
    A("L_cpf_pc:")
    A(f"s_lshr_b32 s{S_T + 4}, s{S_T + 4}, 3")
    A(f"s_lshl_b32 s{S_T + 4}, s{S_T + 4}, 15")
    A(f"v_lshl_add_u32 v96, v0, 7, s{S_T + 4}")
    A("v_min_u32 v96, L_code_end-L_cpf_pc-4, v96")
    A(f"v_add_co_u32 v96, vcc, s{S_T + 2}, v96")
    A(f"v_mov_b32 v97, s{S_T + 3}")
    A("v_addc_co_u32 v97, vcc, 0, v97, vcc")
    A("global_load_dword v98, v[96:97], off")
    A("L_cpf:")


def front(A, name):
    del SLOW[:]
    kernel_head(A, name)
    A("L_code_begin:")
    A("s_cmp_ge_u32 s2, 256")
    A("s_cbranch_scc1 L_exit")
    stamp(A, 0)
    prof_clear(A)
    A(f"s_load_dwordx16 s[{S_P}:{S_P + 15}], s[0:1], 0")
    A(f"s_load_dwordx8 s[{S_P + 16}:{S_P + 23}], s[0:1], 64")
    A(f"s_load_dwordx4 s[{S_P + 24}:{S_P + 27}], s[0:1], 96")
    A(f"s_load_dwordx2 s[{S_P + 28}:{S_P + 29}], s[0:1], 112")
    if CFG["cpf"]:
        code_prefetch(A)
    A("v_lshrrev_b32 v1, 6, v0")
    A(f"v_readfirstlane_b32 s{S_WAVE}, v1")
    A("v_and_b32 v2, 63, v0")
    for i in range(4):
        A(f"v_mov_b32 v{GZ + i}, 0")
    A(f"s_mov_b32 s{S_SP}, 200000")
    A(f"s_and_b32 s{S_CW}, s2, 7")
    A(f"s_mul_i32 s{S_CW}, s{S_CW}, 18")
    A(f"s_lshr_b32 s{S_T}, s2, 3")
    A(f"s_add_u32 s{S_CW}, s{S_CW}, s{S_T}")
    A(f"s_lshl_b32 s{S_CH}, s{S_CW}, 2")
    A(f"s_add_u32 s{S_CH}, s{S_CH}, s{S_WAVE}")
    A(f"s_lshl_b32 s{S_U + 8}, s{S_CW}, 3")
    A(f"s_add_u32 s{S_U + 9}, s{S_U + 8}, 4608")
    A(f"v_mul_u32_u24 v{GA}, 9216, v0")
    A(f"v_lshlrev_b32 v{GA + 1}, 6, v0")
    A(f"v_add_u32 v{GA + 1}, {ST}, v{GA + 1}")
    A("s_waitcnt lgkmcnt(0)")
    srd(A, S_X, S_P, X_BYTES)
    srd(A, S_WS, S_P + 28, WS_END)
    srd(A, S_DBG, S_P + 26, 256)
    A("s_cmp_ge_u32 s2, 144")
    A("s_cbranch_scc1 L_aux")
    A(f"s_load_dwordx2 s[82:83], s[{S_P + 16}:{S_P + 17}], s{S_U + 8}")
    kgen_issue(A)
    A("s_barrier")
    if CFG["pf"]:
        A(f"s_lshr_b32 s{S_T}, s2, 3")
        A(f"s_mul_i32 s{S_T}, s{S_T}, {128 * 1152}")
        A(f"s_and_b32 s{S_T + 1}, s2, 7")
        A(f"s_mul_i32 s{S_T + 1}, s{S_T + 1}, 144")
        A(f"s_add_u32 s{S_T}, s{S_T}, s{S_T + 1}")
        A("v_lshrrev_b32 v1, 1, v0")
        A("v_mul_u32_u24 v1, 1152, v1")
        A("v_and_b32 v3, 1, v0")
        A("v_mul_u32_u24 v3, 140, v3")
        A(f"v_add3_u32 v1, v1, v3, s{S_T}")
        A(f"buffer_load_dword v{GS}, v1, {xs}, 0 offen")
    g = [gather(i) for i in range(8)]
    A.ext(g[:CFG["g0"]])
    del g[:CFG["g0"]]
    late_w2_setup(A, 272)
    A(f"s_mul_i32 s{S_U + 4}, s{S_WAVE}, {STG_WAVE}")
    A(f"s_add_u32 s{S_U + 4}, s{S_U + 4}, 8192")
    shuf_addr(A, S_U + 4)
    conv_setup(A, g if CFG["gs"] > 1 else [])
    late_w2_keep(A, 0, STG_WAVE)
    if CFG["gs"] > 0:
        A(g.pop(0))
    A(f"s_waitcnt vmcnt({8 - len(g) + CFG['pf']})")
    kgen_valu(A, g)
    stamp(A, 2)
    kgen_contract(A, g)
    stamp(A, 3)
    A("s_waitcnt vmcnt(4)")
    stamp(A, 1)
    A.ext(normalise1())
    A("s_waitcnt vmcnt(0)")
    stamp(A, 5)
    chk = [f"v_min_u32 v1, v{GS}, v{GS + 2}", f"v_min3_u32 v1, v1, v{GS + 4}, v{GS + 6}",
           f"v_min3_u32 v1, v1, v{GS + 8}, v{GS + 10}", f"v_min3_u32 v1, v1, v{GS + 12}, v{GS + 14}",
           "v_cmp_eq_u32 vcc, 0, v1"]
    A.ext(chk)
    A("s_cbranch_vccnz L_st_slow")
    A("L_st_back:")
    SLOW.append(["L_st_slow:", f"s_cmp_eq_u32 s{S_SP}, 0", "s_cbranch_scc1 L_st_back", f"s_sub_u32 s{S_SP}, s{S_SP}, 1",
                 "s_sleep 1"] + STLOAD + ["s_waitcnt vmcnt(0)"] + chk + ["s_cbranch_vccnz L_st_slow", "s_branch L_st_back"])
    normalise2(A)
    if not CFG["xdma"]:
        shuf_dma(A, 0)
    A("s_waitcnt lgkmcnt(0)")
    A("s_barrier")
    stamp(A, 4)
    conv_main(A)
    stamp(A, 6)
    A("L_front_end:")
    A(zf_scalar(128))


def out_of_line():
    B = Asm()
    B("L_aux:")
    aux_path(B)
    for code in SLOW:
        B.ext(code)
    return B.lines
```

```python
from common import *

HB = 73728
STB = 147456
TB = STB + 512
K3_LDS = TB + 8192

S_WAVE, S_J, S_TT = 3, 4, 5
S_WS, S_OUT = 8, 12
S_CUR, S_NXT, S_W2B, S_N, S_LP = 16, 17, 18, 19, 20
S_PO, S_FO, S_GL, S_GC, S_RO = 21, 22, 23, 24, 25
S_G8F, S_G8D, S_G8O, S_OO = 26, 27, 28, 29
S_FAC, S_SP = 30, 31
S_T = 72
S_MA, S_MC, S_MD = 74, 76, 78

VW = 4
VF0 = 9
HA = 10
HW = 14
HR = 18
RS = 20
VONE, VFL, VG8, VO = 24, 25, 26, 27
TP = 28
ACC, FIN = 32, 48
PK = 64
LAND = 72
SUM = 80
SQ, SM = 96, 100
UT = 104
ACTV = 108
WR = 140
VPO, VRI, VFI = 212, 213, 214
V4, VG8O, TW, TR = 215, 216, 217, 218
UX = 220
LND2 = 236
NV = 244

STEPPROF = False
CFG = dict(LA1=18, LA2=18, ep=8, epr=2, fs=72 + 16, fl=72 + 68, ck=144 + 60, ac=216 + 52, hs=13, bar1=1, bar2=1, nsent=2, t8a=20, t8b=40, t8c=28, t8d=70, ost=2, LA3=10, d0=12, xfill=0, xlate=0, t8e=0, t8r=2)


def act(m, ks, n=4, o=0):
    i = 4 * ks + m
    return a(4 * i + o, n) if i < 64 else v(ACTV + 4 * (i - 64) + o, n)


def ffn(A, p_out, cleared, late_read, late_store, late_prev):
    cfg = CFG
    if cfg["xlate"]:
        late_store = lambda B, vo: None
    OST = ["", " sc1", " nt", " sc0 sc1", " sc1 nt"][cfg["ost"]]
    ws, so = f"s[{S_WS}:{S_WS + 3}]", f"s[{S_OUT}:{S_OUT + 3}]"
    A(f"s_lshl_b32 s{S_J}, s2, 1")
    A(f"s_bfe_u32 s{S_T}, s2, 0x10003")
    A(f"s_or_b32 s{S_J}, s{S_J}, s{S_T}")
    A(f"s_and_b32 s{S_J}, s{S_J}, 7")
    A(f"s_lshr_b32 s{S_TT}, s2, 4")
    A(f"s_and_b32 s{S_T}, s2, 4")
    A(f"s_lshl_b32 s{S_T}, s{S_T}, 2")
    A(f"s_or_b32 s{S_TT}, s{S_TT}, s{S_T}")
    A(f"v_lshlrev_b32 v{VW}, 4, v2")
    for i in range(1, 5):
        A(f"v_add_u32 v{VW + i}, {4096 * i}, v{VW}")
    A(f"s_mul_i32 s{S_T}, s{S_TT}, 73728")
    A(f"s_lshl_b32 s{S_T + 1}, s{S_WAVE}, 10")
    A(f"s_add_u32 s{S_T}, s{S_T}, s{S_T + 1}")
    A(f"s_mul_i32 s{S_NXT}, s{S_J}, {9 * 73728}")
    A(f"s_mul_i32 s{S_T + 2}, s{S_WAVE}, 18432")
    A(f"s_add_u32 s{S_NXT}, s{S_NXT}, s{S_T + 2}")
    A(f"s_add_u32 s{S_W2B}, s{S_NXT}, {W2S}")
    A(f"s_add_u32 s{S_NXT}, s{S_NXT}, {W1S}")
    A(f"s_add_u32 s{S_T}, s{S_T}, s{S_T + 1}")
    A(f"s_add_u32 s{S_N}, s{S_T}, {HT}")
    vm, lg = Cnt("vmcnt", 63), Cnt("lgkmcnt", 15)
    nx = [0]

    def wload(cur_step):
        f = nx[0]
        nx[0] += 1
        st, ks = divmod(f, 18)
        vm.issue(("w", f))
        sr = S_CUR if st == cur_step else S_NXT
        return f"buffer_load_dwordx4 {v(WR + 4 * ks, 4)}, v{VW + ks // 4}, {ws}, s{sr} offen offset:{1024 * (ks % 4)} sc1"
    setup = Asm()
    B = setup
    srd(B, S_OUT, p_out, X_BYTES)
    B(f"v_lshrrev_b32 v{TP}, 2, v2")
    B(f"v_bfe_u32 v{TP + 1}, v2, 3, 2")
    B(f"v_xor_b32 v{TP + 1}, s{S_WAVE}, v{TP + 1}")
    B(f"v_and_b32 v{TP + 2}, 3, v2")
    B(f"v_lshlrev_b32 v{TP + 2}, 3, v{TP + 2}")
    B(f"v_lshl_add_u32 v{TP + 2}, v{TP}, 7, v{TP + 2}")
    B(f"v_lshl_add_u32 v{HA}, v{TP + 1}, 5, v{TP + 2}")
    for m in range(1, 4):
        B(f"v_xor_b32 v{HA + m}, {32 * m}, v{HA}")
    B(f"v_add_u32 v{HR}, {HB}, v{VW}")
    B(f"v_add_u32 v{HR + 1}, {HB + 36864}, v{VW}")
    B(f"s_lshr_b32 s{S_T}, s{S_WAVE}, 1")
    B(f"s_lshl_b32 s{S_T}, s{S_T}, 12")
    B(f"s_and_b32 s{S_T + 2}, s{S_WAVE}, 1")
    B(f"s_lshl_b32 s{S_T + 2}, s{S_T + 2}, 3")
    B(f"s_add_u32 s{S_T}, s{S_T}, s{S_T + 2}")
    for m in range(4):
        B(f"s_xor_b32 s{S_T + 2}, s{S_T + 1}, {1024 * m}")
        B(f"s_add_u32 s{S_T + 2}, s{S_T + 2}, s{S_T}")
        B(f"v_add_u32 v{HW + m}, s{S_T + 2}, v{HR}")
    B(f"s_mul_i32 s{S_T}, s{S_TT}, {9 * 65536}")
    B(f"s_add_u32 s{S_T}, s{S_T}, {PP}")
    B(f"s_lshl_b32 s{S_G8D}, s{S_J}, 10")
    B(f"s_add_u32 s{S_G8D}, s{S_G8D}, s{S_T}")
    B(f"s_lshl_b32 s{S_T + 2}, s{S_WAVE}, 8")
    B(f"s_add_u32 s{S_G8D}, s{S_G8D}, s{S_T + 2}")
    B(f"s_lshl_b32 s{S_T + 2}, s{S_WAVE}, 11")
    B(f"s_add_u32 s{S_T}, s{S_T}, s{S_T + 2}")
    B(f"s_lshl_b32 s{S_RO}, s{S_J}, 13")
    B(f"s_add_u32 s{S_T + 2}, s{S_T}, s{S_RO}")
    B(f"v_add_u32 v{VPO}, s{S_T + 2}, v{VW}")
    B(f"s_lshl_b32 s{S_PO}, s{S_J}, 16")
    B(f"s_add_u32 s{S_T + 2}, s{S_T}, s{S_PO}")
    B(f"v_add_u32 v{VRI}, s{S_T + 2}, v{VW}")
    B(f"s_lshl_b32 s{S_T}, s{S_TT}, 10")
    B(f"s_add_u32 s{S_T}, s{S_T}, {FL}")
    B(f"s_lshr_b32 s{S_T + 2}, s{S_J}, 1")
    B(f"s_lshl_b32 s{S_T + 2}, s{S_T + 2}, 2")
    B(f"s_add_u32 s{S_G8F}, s{S_T}, s{S_T + 2}")
    B(f"s_lshl_b32 s{S_T + 2}, s{S_WAVE}, 2")
    B(f"s_add_u32 s{S_T}, s{S_T}, s{S_T + 2}")
    B(f"s_lshl_b32 s{S_FO}, s{S_J}, 7")
    B(f"s_add_u32 s{S_T + 2}, s{S_T}, s{S_FO}")
    B(f"v_min_u32 v{VF0}, 1, v2")
    B(f"v_lshl_add_u32 v{VFI}, v{VF0}, 31, s{S_T + 2}")
    B(f"s_lshl_b32 s{S_GL}, s{S_J}, 4")
    B(f"s_add_u32 s{S_T + 2}, s{S_T}, s{S_GL}")
    B(f"v_lshl_add_u32 v{VF0}, v{VF0}, 31, s{S_T + 2}")
    B(f"v_lshlrev_b32 v{V4}, 2, v2")
    B(f"v_lshrrev_b32 v{VG8O}, 5, v2")
    B(f"v_mul_u32_u24 v{VG8O}, 1024, v{VG8O}")
    B(f"v_add_u32 v{VG8O}, v{VG8O}, v{V4}")
    B(f"s_mul_i32 s{S_OO}, s{S_TT}, 73728")
    B(f"s_lshl_b32 s{S_T}, s{S_J}, 2")
    B(f"s_add_u32 s{S_T}, s{S_T}, s{S_WAVE}")
    B(f"s_mul_i32 s{S_T}, s{S_T}, 2304")
    B(f"s_add_u32 s{S_G8O}, s{S_OO}, s{S_T}")
    B(f"s_lshl_b32 s{S_T}, s{S_J}, 7")
    B(f"s_add_u32 s{S_OO}, s{S_OO}, s{S_T}")
    B(f"s_mul_i32 s{S_T}, s{S_WAVE}, 18432")
    B(f"s_add_u32 s{S_OO}, s{S_OO}, s{S_T}")
    B(f"v_lshrrev_b32 v{TP + 3}, 3, v2")
    B(f"v_mul_u32_u24 v{VO}, 1024, v{TP + 3}")
    B(f"v_add_u32 v{VO}, v{VO}, v{VW}")
    B(f"v_xor_b32 v{TR}, v{TP + 3}, v2")
    B(f"v_and_b32 v{TR}, 7, v{TR}")
    B(f"v_lshlrev_b32 v{TR}, 4, v{TR}")
    B(f"v_lshl_add_u32 v{TR}, v{TP + 3}, 7, v{TR}")
    B(f"s_lshl_b32 s{S_T}, s{S_WAVE}, 11")
    B(f"s_add_u32 s{S_T}, s{S_T}, {TB}")
    B(f"v_add_u32 v{TR}, s{S_T}, v{TR}")
    B(f"v_lshrrev_b32 v{TW}, 5, v2")
    B(f"s_lshl_b32 s{S_T}, s{S_WAVE}, 1")
    B(f"v_or_b32 v{TW}, s{S_T}, v{TW}")
    B(f"v_xor_b32 v{TW}, v{TW}, v2")
    B(f"v_and_b32 v{TW}, 7, v{TW}")
    B(f"v_lshlrev_b32 v{TW}, 4, v{TW}")
    B(f"v_and_b32 v{TP + 3}, 15, v2")
    B(f"v_lshl_add_u32 v{TW}, v{TP + 3}, 7, v{TW}")
    B(f"v_bfe_u32 v{TP + 3}, v2, 4, 1")
    B(f"v_lshl_add_u32 v{TW}, v{TP + 3}, 3, v{TW}")
    B(f"v_add_u32 v{TW}, {TB}, v{TW}")
    B(f"v_lshrrev_b32 v{TP + 3}, 3, v2")
    B(f"v_min_u32 v{TP + 3}, 1, v{TP + 3}")
    B(f"v_mul_u32_u24 v{VG8}, 144, v2")
    B(f"v_lshl_add_u32 v{VG8}, v{TP + 3}, 31, v{VG8}")
    B(f"v_mov_b32 v{VONE}, 1")
    B(f"s_cmp_eq_u32 s{S_J}, 0")
    B(f"s_cselect_b32 s{S_FAC}, 1.0, 0")
    for i in range(4):
        B(f"v_mov_b32 v{PK + i}, {ONES}")
    B(f"s_mov_b32 s{S_MA}, 0xaaaaaaaa")
    B(f"s_mov_b32 s{S_MA + 1}, 0xaaaaaaaa")
    B(f"s_mov_b32 s{S_MC}, 0xcccccccc")
    B(f"s_mov_b32 s{S_MC + 1}, 0xcccccccc")
    B(f"s_mov_b32 s{S_MD}, 0x00f0000f")
    B(f"s_mov_b32 s{S_MD + 1}, 0xf0000f00")
    A.ext(setup.lines)
    A(f"s_mov_b32 s{S_SP}, 400000")
    A(f"s_and_b32 s{S_T}, s2, 7")
    A(f"s_lshl_b32 s{S_T}, s{S_T}, 7")
    A(f"s_add_u32 s{S_T}, s{S_T}, {CNT}")
    A(f"v_lshl_add_u32 v{UX}, v2, 10, s{S_T}")
    A(f"s_add_u32 s{S_T}, s{S_T}, {CN3 - CNT}")
    A(f"v_min_u32 v{UX + 2}, 1, v0")
    A(f"v_lshl_add_u32 v{UX + 2}, v{UX + 2}, 31, s{S_T}")
    A(f"v_and_b32 v{UX + 3}, 7, v2")
    A(f"v_lshlrev_b32 v{UX + 3}, 7, v{UX + 3}")
    A(f"v_add_u32 v{UX + 3}, {CN3}, v{UX + 3}")
    A(f"s_bfe_u32 s{S_T}, s2, 0x40003")
    A(f"s_lshl_b32 s{S_T}, s{S_T}, 10")
    A(f"s_add_u32 s{S_T}, s{S_T}, {CNT}")
    A(f"v_lshl_add_u32 v{UX + 1}, v2, 7, s{S_T}")
    NS = cfg["nsent"]
    for i in range(4):
        A(f"v_mov_b32 v{LAND + i}, -1")

    def fill(B, vo=VPO):
        for b in range(8 - NS, 8) if not cfg["xfill"] else ():
            B(f"s_add_u32 s{S_GC}, s{S_PO}, {65536 * b}")
            B(f"s_and_b32 s{S_GC}, s{S_GC}, 0x7ffff")
            for h in range(2):
                B(f"buffer_store_dwordx4 {v(LAND, 4)}, v{vo}, {ws}, s{S_GC} offen offset:{1024 * h} sc1")
    A("s_waitcnt vmcnt(0)")
    stamp(A, 1, 1)
    late_read(A)
    A("s_barrier")
    A(f"s_cmp_lg_u32 s{S_WAVE}, 0")
    A("s_cbranch_scc1 L_s2_other")
    cleared(A, VFL, S_SP)
    A("s_mov_b64 exec, 0xffff")
    A(f"buffer_atomic_add v{VONE}, v{UX}, {ws}, 0 offen sc1")
    A("s_mov_b64 exec, 0xff")
    A("L_s2_poll:")
    A(f"v_mov_b32 v{VFL}, 0")
    A(f"buffer_atomic_add v{VFL}, v{UX + 1}, {ws}, 0 offen sc0 sc1")
    A(f"s_sub_u32 s{S_SP}, s{S_SP}, 1")
    A("s_waitcnt vmcnt(0)")
    A(f"v_cmp_ne_u32 vcc, 32, v{VFL}")
    A("s_cbranch_vccz L_s2_ok")
    A(f"s_cmp_lg_u32 s{S_SP}, 0")
    A("s_cbranch_scc1 L_s2_poll")
    A("L_s2_ok:")
    A("s_mov_b64 exec, -1")
    A("s_branch L_s2_done")
    A("L_s2_other:")
    A("s_waitcnt lgkmcnt(0)")
    late_store(A, VW)
    fill(A)
    A(f"s_cmp_eq_u32 s{S_WAVE}, 3")
    A("s_cbranch_scc1 L_s2_done")
    A(f"s_cmp_eq_u32 s{S_WAVE}, 2")
    A("s_cbranch_scc1 L_s2_w2")
    late_prev(A)
    late_read(A)
    A("s_waitcnt lgkmcnt(0)")
    late_store(A, VW)
    A("s_branch L_s2_done")
    A("L_s2_w2:")
    A(f"v_subrev_u32 v{UT}, 0x1000, v{VPO}")
    fill(A, UT)
    A("L_s2_done:")
    A("s_barrier")
    stamp(A, 2, 1)
    A(f"s_lshl_b32 s{S_T + 1}, s{S_WAVE}, 11")

    def hdma(p):
        return [f"s_add_u32 m0, s{S_T + 1}, {8192 * p}", f"s_add_u32 s{S_T}, s{S_N}, {8192 * p}",
                ("vm", None, f"buffer_load_dwordx4 v{VW}, {ws}, s{S_T} offen sc1 lds"),
                ("vm", ("hd", p), f"buffer_load_dwordx4 v{VW}, {ws}, s{S_T} offen offset:1024 sc1 lds")]

    def hread(ks):
        out = []
        if ks == 16:
            out += [f"v_add_u32 v{HA + m}, 65536, v{HA + m}" for m in range(4)]
        for m in range(4):
            for h in range(2):
                off = (4096 * ks + 2048 * h) & 0xffff
                out.append(("lg", ("h", ks), f"ds_read_b64_tr_b16 {act(m, ks, 2, 2 * h)}, v{HA + m} offset:{off}"))
        return out

    def Hread(ks):
        r, off = (HR, 4096 * ks) if ks < 9 else (HR + 1, 4096 * (ks - 9))
        return [("lg", ("H", ks), f"ds_read_b128 {act(m, ks)}, v{r} offset:{off + 1024 * m}") for m in range(4)]

    def ep1():
        out = []
        for m in range(4):
            out += [f"v_cvt_pk_bf16_f32 v{PK + 2 * m + h}, v{FIN + 4 * m + 2 * h}, v{FIN + 4 * m + 2 * h + 1}" for h in range(2)]
            out += [f"v_pk_max_i16 v{PK + 2 * m + h}, v{PK + 2 * m + h}, 0" for h in range(2)]
            out.append(("lg", "Hw", f"ds_write_b64 v{HW + m}, {v(PK + 2 * m, 2)}"))
            out.append(f"v_add_u32 v{HW + m}, 8192, v{HW + m}")
        return out

    def hres_read():
        return [("lg", "hres", f"ds_read_b64_tr_b16 {v(LAND + 2 * m, 2)}, v{HA + m}") for m in range(4)]

    def unpack_to_sum():
        out = [("lgw", "hres")]
        for i in range(8):
            out += [f"v_lshlrev_b32 v{SUM + 2 * i}, 16, v{LAND + i}", f"v_and_b32 v{SUM + 2 * i + 1}, 0xffff0000, v{LAND + i}"]
        return out

    def scale_pack(m, add):
        out = []
        for i in range(4):
            r = FIN + 4 * m + i
            out.append(f"v_fma_f32 v{r}, v{r}, v{RS + m}, v{SUM + 4 * m + i}" if add else f"v_mul_f32 v{r}, v{r}, v{RS + m}")
        return out + [f"v_cvt_pk_bf16_f32 v{PK + 2 * m + h}, v{FIN + 4 * m + 2 * h}, v{FIN + 4 * m + 2 * h + 1}" for h in range(2)]

    def rot(sr, delta, mask):
        op = "s_add_u32" if delta > 0 else "s_sub_u32"
        return [f"{op} s{sr}, s{sr}, {abs(delta)}", f"s_and_b32 s{sr}, s{sr}, {mask}"]

    def tr_write(m):
        return ("lg", "tw", f"ds_write_b64 v{TW}, {v(PK + 2 * m, 2)} offset:{2048 * m}")

    def tr_read():
        return [("lg", "tr", f"ds_read_b128 {v(PK + 4 * h, 4)}, v{TR} offset:{1024 * h}") for h in range(2)]

    def pub(b, sr, h):
        return ("vm", ("pst", b), f"buffer_store_dwordx4 {v(PK + 4 * h, 4)}, v{VPO}, {ws}, s{sr} offen offset:{1024 * h} sc1")

    def ep2(b):
        out = [] if b == 0 else rot(S_PO, 65536, 0x7ffff)
        for m in range(4):
            out += scale_pack(m, b == 0)
            if b == 0:
                out.append(tr_write(m))
            elif m & 1:
                out.append(pub(b, S_PO, m >> 1))
        return out

    def flag_st(b):
        return ([] if b == 0 else rot(S_FO, 128, 0x3ff)) + \
            [("vmw", ("pst", b)), ("vm", None, f"buffer_atomic_add v{VONE}, v{VF0}, {ws}, s{S_FO} offen sc1")]
    slow = []

    def poll(b):
        ad = f"v{VG8}, {ws}, s{S_G8F}" if b == 0 else f"v{VFI}, {ws}, s{S_GL}"
        return f"buffer_atomic_add v{VFL}, {ad} offen sc0 sc1"

    def flag_ld(b):
        return ([] if b == 0 else rot(S_GL, -16, 0x7f)) + [f"v_mov_b32 v{VFL}, 0", ("vm", ("fl", b), poll(b))]

    def check(b, tag):
        test = [f"v_cmp_ne_u32 vcc, 1, v{VFL}", f"s_and_b32 s{S_GC}, vcc_lo, {0xff if b == 0 else 1}"]
        code = [f"L_k3_slow{tag}:", f"s_cmp_eq_u32 s{S_SP}, 0", f"s_cbranch_scc1 L_k3_back{tag}", f"s_sub_u32 s{S_SP}, s{S_SP}, 1",
                f"v_mov_b32 v{VFL}, 0", poll(b), "s_waitcnt vmcnt(0)"] + test + \
               [f"s_cbranch_scc1 L_k3_slow{tag}", f"s_branch L_k3_back{tag}"]
        slow.append(code)
        return [("vmw", ("fl", b)), test[0], ("seq", [test[1], f"s_cbranch_scc1 L_k3_slow{tag}", f"L_k3_back{tag}:"])]

    def data_ld(b, dst=LAND):
        if b == 0:
            out = []
            for sj in range(8):
                out += [f"s_add_u32 s{S_T + 3}, s{S_G8D}, {8 * 65536 + sj * 8192}",
                        ("vm", ("dat", b), f"buffer_load_dword v{dst + sj}, v{V4}, {ws}, s{S_T + 3} offen sc1")]
            return out
        return rot(S_RO, -8192, 0xffff) + \
            [("vm", ("dat", b), f"buffer_load_dwordx4 {v(dst + 4 * h, 4)}, v{VRI}, {ws}, s{S_RO} offen offset:{1024 * h} sc1") for h in range(2)]

    def accum(b, src=LAND):
        out = [("vmw", ("dat", b))]
        for i in range(8):
            out += [f"v_lshlrev_b32 v{UX + 2 * i}, 16, v{src + i}", f"v_and_b32 v{UX + 2 * i + 1}, 0xffff0000, v{src + i}"]
        if b == 0:
            for w in (8, 4, 2):
                out += [f"v_add_f32 v{UX + i}, v{UX + i}, v{UX + w + i}" for i in range(w)]
            return out + [f"v_cvt_pk_bf16_f32 v{SQ}, v{UX}, v{UX + 1}",
                          ("vm", None, f"buffer_store_dword v{SQ}, v{VG8O}, {so}, s{S_G8O} offen offset:1024{OST}")]
        return out + [f"v_add_f32 v{SUM + i}, v{SUM + i}, v{UX + i}" for i in range(16)]

    def stats_fin():
        return [f"v_cndmask_b32 v{SQ}, v{SQ}, v{SQ + 1}, s[{S_MA}:{S_MA + 1}]",
                f"v_cndmask_b32 v{SQ + 2}, v{SQ + 2}, v{SQ + 3}, s[{S_MA}:{S_MA + 1}]",
                f"v_mul_f32 v{SM}, {INV576}, v{SM}",
                f"v_cndmask_b32 v{SQ}, v{SQ}, v{SQ + 2}, s[{S_MC}:{S_MC + 1}]",
                f"v_and_b32 v{TP}, 15, v2", f"v_mul_f32 v{SQ}, {INV576}, v{SQ}",
                f"v_lshlrev_b32 v{TP}, 2, v{TP}", f"v_fma_f32 v{SQ}, -v{SM}, v{SM}, v{SQ}",
                f"v_add_u32 v{TP}, {STB}, v{TP}", f"v_max_f32 v{SQ}, 0, v{SQ}",
                f"s_lshl_b32 s{S_T}, s{S_WAVE}, 6", f"v_add_f32 v{SQ}, {EPS}, v{SQ}",
                f"v_add_u32 v{TP + 1}, s{S_T}, v{TP}", f"v_rsq_f32 v{SQ}, v{SQ}",
                f"v_add_u32 v{TP + 2}, 256, v{TP + 1}",
                f"v_cndmask_b32 v{TP + 1}, v{TP + 2}, v{TP + 1}, s[{S_MD}:{S_MD + 1}]",
                ("lg", "st", f"ds_write_b32 v{TP + 1}, v{SQ}")]

    def put(out, it):
        if isinstance(it, str):
            out.append(it)
        elif it[0] == "lg":
            lg.issue(it[1])
            out.append(it[2])
        elif it[0] == "vm":
            vm.issue(it[1])
            out.append(it[2])
        elif it[0] == "lgw":
            out.extend(lg.wait(it[1]))
        elif it[0] == "vmw":
            out.extend(vm.wait(it[1]))
        elif it[0] == "w":
            out.append(wload(it[1]))
        elif it[0] == "seq":
            out.extend(it[1])
        elif it[0] == "bar":
            out.extend(lg.wait(it[1]) if it[1] else [])
            out.append("s_barrier")

    def step(n, la, head=(), streams=(), pre=None, gram=False, prei=None):
        out, pre = [], pre or {}
        sts = [[st, rate, list(items)] for st, rate, items in streams]
        if STEPPROF:
            out.append(f"s_memtime s[{32 + 2 * n}:{33 + 2 * n}]")
        out.append(f"s_mov_b32 s{S_CUR}, s{S_NXT}")
        if (cfg["bar1"] and 1 <= n <= 7) or (cfg["bar2"] and n >= 10):
            out.append("s_barrier")
        for it in head:
            put(out, it)
        seen, left = set(), {m: 18 for m in range(4)}
        for p in range(9):
            f0 = 18 * n + 2 * p
            for it in pre.get(p, ()):
                put(out, it)
            out.extend(vm.wait(("w", f0 + 1), force=n > 0))
            ms = range(4) if p % 2 == 0 else range(3, -1, -1)
            seq = [(2 * p + (d if i % 2 == 0 else 1 - d), m) for i, m in enumerate(ms) for d in range(2)]
            for i, (ks, m) in enumerate(seq):
                for it in (prei or {}).get(8 * p + i, ()):
                    put(out, it)
                left[m] -= 1
                d = FIN if left[m] == 0 else ACC
                c = v(ACC + 4 * m, 4) if m in seen else "0"
                seen.add(m)
                out.append(f"v_mfma_f32_16x16x32_bf16 {v(d + 4 * m, 4)}, {v(WR + 4 * ks, 4)}, {act(m, ks)}, {c}")
                if la and i in (1, 3, 5, 7) and nx[0] < min(324, f0 + la - (1 if i < 5 else 0)):
                    out.append(wload(n))
                idx = 8 * p + i
                for stt in sts:
                    if idx >= stt[0]:
                        k = 0
                        while k < stt[1] and stt[2]:
                            it = stt[2].pop(0)
                            put(out, it)
                            if isinstance(it, str) or it[0] not in ("lgw", "vmw"):
                                k += 1
            if gram:
                gi = list(gram.get(p, ()))
                for k, (dst, x) in enumerate(((SQ, None), (SQ, None), (SM, v(PK, 4)), (SM, v(PK, 4)))):
                    ks = 2 * p + (k & 1)
                    out.append(f"v_mfma_f32_16x16x32_bf16 {v(dst, 4)}, {x or act(0, ks)}, {act(0, ks)}, {'0' if ks == 0 else v(dst, 4)}")
                    for it in gi[2 * k: 2 * k + 2 if k < 3 else None]:
                        put(out, it)
        for stt in sts:
            assert not stt[2], (n, stt)
        return out

    LA1, LA2, EP = cfg["LA1"], cfg["LA2"], cfg["ep"]
    nextw1 = [f"s_add_u32 s{S_NXT}, s{S_NXT}, 73728"]
    nextw2 = [f"s_add_u32 s{S_N}, s{S_N}, 1", f"s_and_b32 s{S_N}, s{S_N}, 7", f"s_mul_i32 s{S_T}, s{S_N}, 73728",
              f"s_add_u32 s{S_NXT}, s{S_W2B}, s{S_T}"]
    steps, pro = [], []
    groups = []
    for p in range(9):
        for m in (range(4) if p % 2 == 0 else range(3, -1, -1)):
            g = []
            if p == 8:
                g.append(f"v_add_u32 v{HA + m}, 65536, v{HA + m}")
            for ks in (2 * p, 2 * p + 1):
                for h in range(2):
                    off = (4096 * ks + 2048 * h) & 0xffff
                    g.append(("lg", ("h", len(groups)), f"ds_read_b64_tr_b16 {act(m, ks, 2, 2 * h)}, v{HA + m} offset:{off}"))
            groups.append(g)
    strm = [hdma(0)]
    for p in range(9):
        strm += ([hdma(p + 1)] if p < 8 else []) + [[("w", 0), ("w", 0)]]
    strm += [[("w", 0), ("w", 0)] for _ in range(8)]
    n0 = 3 + cfg["d0"] // 2
    A(f"s_mov_b32 s{S_CUR}, s{S_NXT}")
    for blk in strm[:n0]:
        for it in blk:
            put(pro, it)
    put(pro, ("vmw", ("hd", 0)))
    pro += ["s_barrier"] + stamp_item(3)
    for g in groups[:4]:
        for it in g:
            put(pro, it)
    A.ext(pro)
    gram, k = {}, n0
    for p in range(9):
        gram[p] = []
        for _ in range(2):
            if k < len(strm):
                isw = strm[k][0] == ("w", 0)
                nw = sum(2 for blk in strm[:k + 1] if blk[0] == ("w", 0))
                if isw and nw > 2 * p + 2 + 16:
                    break
                gram[p] += strm[k]
                k += 1
    steps.append(step(0, 0, head=nextw1, gram=gram,
                      streams=[(2 * q, 2 if q < 28 else 3, groups[q + 4]) for q in range(32)],
                      pre={p: [("vmw", ("w", 2 * p + 1)), "s_barrier"] for p in range(8)},
                      prei={2 * q: [("lgw", ("h", q))] for q in range(36)}))
    arr3 = [("vm", None, f"buffer_atomic_add v{VONE}, v{UX + 2}, {ws}, 0 offen sc1")]
    assert cfg["bar1"]
    steps.append(step(1, LA1, head=nextw1 + arr3, streams=[(EP, 1, ep1() + stats_fin())]))
    for n in range(2, 7):
        steps.append(step(n, LA1, head=nextw1, streams=[(EP, 1, ep1())]))
    ld3 = f"buffer_load_dword v{VFL}, v{UX + 3}, {ws}, 0 offen sc1"
    slow.append(["L_k3_slow3:", f"s_cmp_eq_u32 s{S_SP}, 0", "s_cbranch_scc1 L_k3_back3", f"s_sub_u32 s{S_SP}, s{S_SP}, 1",
                 "s_sleep 8", ld3, "s_waitcnt vmcnt(0)", f"v_cmp_ne_u32 vcc, 32, v{VFL}",
                 "s_cbranch_vccnz L_k3_slow3", "s_branch L_k3_back3"])
    chk3 = [("vmw", "c3"), f"v_cmp_ne_u32 vcc, 32, v{VFL}", ("seq", ["s_cbranch_vccnz L_k3_slow3", "L_k3_back3:"])]
    steps.append(step(7, LA1, head=nextw1 + [("vm", "c3", ld3)], streams=[(EP, 1, ep1()), (68, 1, chk3)]))
    hsl = {8: {}, 9: {}}
    for q in range(8):
        for k, it in enumerate(Hread(2 * q) + Hread(2 * q + 1)):
            g = 8 + cfg["hs"] * q + (k * cfg["hs"]) // 8
            hsl[8 + g // 72].setdefault(g % 72, []).append(it)
    hd = [f"s_add_u32 s{S_NXT}, s{S_W2B}, {8 * 73728}", f"s_mov_b32 s{S_N}, s{S_J}", f"s_mov_b32 s{S_SP}, 400000", ("bar", "Hw")]
    rsr = [("lg", "rs", f"ds_read_b32 v{RS + m}, v{TP} offset:{64 * m}") for m in range(4)]
    steps.append(step(8, LA1, head=hd, pre={7: [("bar", "Hw")]}, prei=hsl[8], streams=[(0, 1, rsr), (EP, 1, ep1())]))
    fixa = [f"s_lshl_b32 s{S_T + 1}, s{S_WAVE}, 5"] + [f"v_xor_b32 v{HA + m}, s{S_T + 1}, v{HA + m}" for m in range(4)]
    fixa += [f"s_lshl_b32 s{S_T + 1}, s{S_WAVE}, 11"] + [f"v_add_u32 v{HA + m}, s{S_T + 1}, v{HA + m}" for m in range(4)]
    scale = [f"v_mul_f32 v{SUM + i}, s{S_FAC}, v{SUM + i}" for i in range(16)]
    pre = {p: [("lgw", ("H", 2 * p + 1))] for p in range(9)}
    pre[5] = pre[5] + [("bar", "Hw")]
    own = [f"s_lshl_b32 s{S_T + 1}, s{S_J}, 13", f"s_sub_u32 s{S_T + 1}, s{S_T + 1}, 65536"]
    own += [f"v_add_u32 v{HA + m}, s{S_T + 1}, v{HA + m}" for m in range(4)]
    assert cfg["fl"] + 2 <= cfg["ck"] <= cfg["fl"] + 70 and cfg["ck"] + 10 <= cfg["ac"] <= cfg["ck"] + 64
    ev = {n: [] for n in range(9)}
    late = []
    for b in range(8 - NS):
        for kind in ("fs", "fl", "ck", "ac"):
            g = 72 * (b + 1) + cfg[kind]
            (ev[g // 72] if g // 72 <= 7 else late).append((g % 72 if g // 72 <= 7 else g, kind, b))

    def ev_items(kind, b, tag, dst=LAND):
        return {"fs": lambda: flag_st(b), "fl": lambda: flag_ld(b), "ck": lambda: check(b, tag) + data_ld(b, dst),
                "ac": lambda: accum(b, dst)}[kind]()
    for n in range(8):
        st = []
        if n == 0:
            st = [(0, 2, fixa + hres_read()), (EP, 1, ep1()), (40, 1, Hread(16) + Hread(17)), (48, 2, unpack_to_sum() + scale)]
        else:
            st = [(EP, cfg["epr"], ep2(n - 1) + (unpack_to_sum() if n == 1 else []))]
            if n == 1:
                st.insert(0, (0, 2, own + hres_read()))
                st.append((32, 1, tr_read() + [f"s_mov_b32 s{S_T + 2}, {8 * 65536}"]))
                st.append((40, 1, [("lgw", "tr"), pub(0, S_T + 2, 0), pub(0, S_T + 2, 1)]))
        for idx, kind, b in sorted(ev[n]):
            st.append((idx, 2, ev_items(kind, b, "@")))
        body = step(9 + n, LA2 if n < 7 else cfg['LA3'], head=(stamp_item(4) if n == 0 else []) + nextw2, streams=st,
                    pre=pre if n == 0 else ({4: [("bar", "tw")]} if n == 1 else None), prei=hsl[9] if n == 0 else None)
        steps.append(body)
    late.sort()
    pend = {k: [b for _, kk, b in late if kk == k] for k in ("fs", "fl", "ck", "ac")}
    assert not pend["fs"] and not pend["fl"] and len(pend["ck"]) <= 1, pend
    land = {b: LAND for b in pend["ac"]}
    st = [(6, 2, ep2(7))]
    for b in pend["ck"]:
        land[b] = LND2
        st.append((cfg["t8a"], 2, ev_items("ck", b, f"t{b}", LND2)))
    acc8 = [it for b in pend["ac"] for it in accum(b, land[b])]
    st.append((cfg["t8c"], cfg["t8r"], acc8))

    def sent_ld(b, dst):
        return rot(S_RO, -8192, 0xffff) + [f"s_mov_b32 s{S_T + b - 4}, s{S_RO}"] + \
            [("vm", ("dat", b), f"buffer_load_dwordx4 {v(dst + 4 * h, 4)}, v{VRI}, {ws}, s{S_RO} offen offset:{1024 * h} sc1") for h in range(2)]

    def sent_chk(b, dst):
        test = [f"v_max3_u32 v{UT}, v{dst}, v{dst + 1}, v{dst + 2}", f"v_max3_u32 v{UT + 1}, v{dst + 3}, v{dst + 4}, v{dst + 5}",
                f"v_max3_u32 v{UT}, v{UT}, v{dst + 6}, v{dst + 7}", f"v_max_u32 v{UT}, v{UT}, v{UT + 1}", f"v_cmp_eq_u32 vcc, -1, v{UT}"]
        slow.append([f"L_k3_slowq{b}:", f"s_cmp_eq_u32 s{S_SP}, 0", f"s_cbranch_scc1 L_k3_backq{b}", f"s_sub_u32 s{S_SP}, s{S_SP}, 1"] +
                    [f"buffer_load_dwordx4 {v(dst + 4 * h, 4)}, v{VRI}, {ws}, s{S_T + b - 4} offen offset:{1024 * h} sc1" for h in range(2)] +
                    ["s_waitcnt vmcnt(0)"] + test + [f"s_cbranch_vccnz L_k3_slowq{b}", f"s_branch L_k3_backq{b}"])
        return [("vmw", ("dat", b))] + test + [("seq", [f"s_cbranch_vccnz L_k3_slowq{b}", f"L_k3_backq{b}:"])]
    tail_items = []
    for i, b in enumerate(range(8 - NS, 8)):
        land[b] = WR + 8 * i
        st.append((cfg["t8d"] - 2 if b == 7 else cfg["t8b"] + 4 * i, 2, sent_ld(b, land[b])))
        if b < 7 and cfg["t8e"]:
            acc8 += sent_chk(b, land[b]) + accum(b, land[b])
        else:
            tail_items += sent_chk(b, land[b]) + accum(b, land[b])
    st.sort(key=lambda x: x[0])
    steps.append(step(17, cfg['LA3'], head=stamp_item(5), streams=st))
    uniq, k = [], 0
    site = [c for c in slow if "@" in c[0]]
    slow[:] = [c for c in slow if "@" not in c[0]]
    prev = None
    for i, body in enumerate(steps):
        if any("@" in x for x in body):
            code = site[k]
            k += 1
            if body != prev:
                lab = f"s{i}"
                slow.append([x.replace("@", lab) for x in code])
            prev = body
            steps[i] = [x.replace("@", lab) for x in body]
    i = 0
    while i < len(steps):
        e = i
        while e + 1 < len(steps) and steps[e + 1] == steps[i]:
            e += 1
        if e > i:
            A(f"s_mov_b32 s{S_LP}, {e - i + 1}")
            A(f"L_k3_loop{i}:")
            body = list(steps[i])
            cut = len(body)
            while cut > len(body) - 2 and body[cut - 1].startswith(("v_mfma", "buffer_", "v_add", "v_and", "v_lsh")):
                cut -= 1
            A.ext(body[:cut])
            A(f"s_sub_u32 s{S_LP}, s{S_LP}, 1")
            A(f"s_cmp_lg_u32 s{S_LP}, 0")
            A.ext(body[cut:])
            A(f"s_cbranch_scc1 L_k3_loop{i}")
        else:
            A.ext(steps[i])
        i = e + 1
    tail = []
    fin = [f"v_fma_f32 v{SUM + i}, v{FIN + i}, v{RS + i // 4}, v{SUM + i}" for i in range(16)]
    for it in fin + tail_items:
        put(tail, it)
    for m in range(4):
        tail += [f"v_cvt_pk_bf16_f32 v{PK + 2 * m + h}, v{SUM + 4 * m + 2 * h}, v{SUM + 4 * m + 2 * h + 1}" for h in range(2)]
        put(tail, tr_write(m))
    tail.append(f"s_add_u32 s{S_T}, s{S_OO}, 9216")
    put(tail, ("bar", "tw"))
    for it in tr_read():
        put(tail, it)
    tail += ["s_waitcnt lgkmcnt(1)", f"buffer_store_dwordx4 {v(PK, 4)}, v{VO}, {so}, s{S_OO} offen{OST}",
             "s_waitcnt lgkmcnt(0)", f"buffer_store_dwordx4 {v(PK + 4, 4)}, v{VO}, {so}, s{S_T} offen{OST}"]
    if STEPPROF:
        A("s_memtime s[68:69]")
    A.ext(tail)
    stamp(A, 6, 1)
    if STEPPROF:
        A("s_waitcnt lgkmcnt(0)")
        A("v_lshrrev_b32 v1, 6, v0")
        A("v_lshlrev_b32 v1, 7, v1")
        A("s_lshl_b32 s70, s2, 9")
        A(f"s_add_u32 s70, s70, {PROF_OFF + (8 << 20)}")
        A("s_mov_b32 s10, 0x10000000")
        for n in range(19):
            A(f"v_mov_b32 v4, s{32 + 2 * n}")
            A(f"buffer_store_dword v4, v1, {ws}, s70 offen offset:{4 * n}")
        A(f"v_mov_b32 v4, s{S_SP}")
        A(f"buffer_store_dword v4, v1, {ws}, s70 offen offset:{4 * 19}")
    prof_flush(A, 0)
    A("L_exit:")
    A("s_endpgm")
    for code in slow:
        A.ext(code)
```
